```python
import torch

def _softmax(x, axis=-1):
    return torch.softmax(x, dim=axis)

def _gelu(x):
    return torch.nn.functional.gelu(x, approximate='tanh')

def _silu(x):
    return torch.nn.functional.silu(x)

def _sigmoid(x):
    return torch.sigmoid(x)

def _layernorm(x, axis=-1, eps=1e-05):
    m = x.mean(dim=axis, keepdim=True)
    v = x.var(dim=axis, keepdim=True, unbiased=False)
    return (x - m) / torch.sqrt(v + eps)

def _scatter_add(tgt, idx, src, axis=0):
    return tgt.clone().index_add_(axis, idx, src)

def _segment_sum(src, seg, n):
    out = torch.zeros((n,) + src.shape[1:], dtype=src.dtype)
    return out.index_add_(0, seg, src)

def _pad(x, pw):
    flat = tuple((v for pair in reversed(pw) for v in pair))
    return torch.nn.functional.pad(x, flat)
kernel_name = 'adaLN_cond__gqa_block_cached__glu_gated_geglu__prompt'

def setup_inputs():

    _w = lambda a: (lambda t: t.to(torch.bfloat16) if t.is_floating_point() else t)(torch.as_tensor(a))

    def _A_setup():
        B, Sq, D = (1, 2048, 512)
        Hq, Hkv, Sk, Dh = (32, 8, 2048, 128)
        assert Hq % Hkv == 0, (Hq, Hkv)
        return {'x': _w((lambda *s: torch.randn(*s, dtype=torch.bfloat16) * 0.05)(B, Sq, D)), 'k_cache': _w((lambda *s: torch.randn(*s, dtype=torch.bfloat16) * 0.8)(B, Hkv, Sk, Dh)), 'v_cache': _w((lambda *s: torch.randn(*s, dtype=torch.bfloat16) * 3.2)(B, Hkv, Sk, Dh)), 'wq': _w((lambda *s: torch.randn(*s, dtype=torch.bfloat16) * 0.8)(D, Hq * Dh) * D ** (-0.5)), 'wo': _w((lambda *s: torch.randn(*s, dtype=torch.bfloat16) * 3.2)(Hq * Dh, D) * (Hq * Dh) ** (-0.5))}
    _A_in = _A_setup()

    def _B_setup():
        B, S, Dm, Df = (1, 2048, 512, 1792)
        return {'x': _w((lambda *s: torch.randn(*s, dtype=torch.bfloat16) * 0.05)(B, S, Dm)), 'w_gate': _w((lambda *s: torch.randn(*s, dtype=torch.bfloat16) * 3.2)(Dm, Df) * Dm ** (-0.5)), 'w_up': _w((lambda *s: torch.randn(*s, dtype=torch.bfloat16) * 3.2)(Dm, Df) * Dm ** (-0.5)), 'w_down': _w((lambda *s: torch.randn(*s, dtype=torch.bfloat16) * 3.2)(Df, Dm) * Df ** (-0.5))}
    _B_in = _B_setup()
    return {'A_x': _A_in['x'], 'A_k_cache': _A_in['k_cache'], 'A_v_cache': _A_in['v_cache'], 'A_wq': _A_in['wq'], 'A_wo': _A_in['wo'], 'B_x': _B_in['x'], 'B_w_gate': _B_in['w_gate'], 'B_w_up': _B_in['w_up'], 'B_w_down': _B_in['w_down'], 'c': _w((lambda *s: torch.randn(*s, dtype=torch.bfloat16) * 0.4)(1, 512) * 8.0), 'w_mod': _w((lambda *s: torch.randn(*s, dtype=torch.bfloat16) * 0.4)(512, 6 * 512) * 512 ** (-0.5) * 8.0)}

def reference(A_x, A_k_cache, A_v_cache, A_wq, A_wo, B_x, B_w_gate, B_w_up, B_w_down, c, w_mod):

    def _A_ref(x, k_cache, v_cache, wq, wo):
        B, Sq, D = x.shape
        Hq, Dh = (32, 128)
        Hkv = k_cache.shape[1]
        rep = Hq // Hkv
        q = (lambda x, *d: x.permute(*d))((x @ wq).reshape(B, Sq, Hq, Dh), 0, 2, 1, 3)
        k = (lambda x, n, axis: torch.repeat_interleave(x, n, dim=axis))(k_cache, rep, axis=1)
        v = (lambda x, n, axis: torch.repeat_interleave(x, n, dim=axis))(v_cache, rep, axis=1)
        scores = torch.einsum('bhqd,bhkd->bhqk', q, k) * Dh ** (-0.5)
        p = _softmax(scores, axis=-1)
        o = torch.einsum('bhqk,bhkd->bhqd', p, v)
        return (lambda x, *d: x.permute(*d))(o, 0, 2, 1, 3).reshape(B, Sq, Hq * Dh) @ wo

    def _B_ref(x, w_gate, w_up, w_down):
        g = torch.einsum('bsd,df->bsf', x, w_gate)
        u = torch.einsum('bsd,df->bsf', x, w_up)
        h = _gelu(g) * u
        return torch.einsum('bsf,fd->bsd', h, w_down)
    x = A_x
    mod = (_silu(c) @ w_mod).reshape(c.shape[0], 6, 1, -1)
    sa, ca, ga, sb, cb, gb = (mod[:, 0].clone(), mod[:, 1].clone(), mod[:, 2].clone(), mod[:, 3].clone(), mod[:, 4].clone(), mod[:, 5].clone())
    h = _layernorm(x, axis=-1) * (1 + ca) + sa
    x = x + ga * _A_ref(h, A_k_cache, A_v_cache, A_wq, A_wo)
    h = _layernorm(x, axis=-1) * (1 + cb) + sb
    x = x + gb * _B_ref(h, B_w_gate, B_w_up, B_w_down)
    return x
```

```python
class WS:
    mod = 0
    q = 1 << 20
    o = q + (16 << 20)
    part = o + (16 << 20)
    x1 = part + (32 << 20)
    h2 = x1 + (2 << 20)
    hh = h2 + (2 << 20)
    total = hh + (8 << 20)
    has_x1 = True
```

```python
import sys, os
sys.path.insert(0, os.path.dirname(__file__))
from layout import WS

NAME = "adaLN_cond__gqa_block_cached__glu_gated_geglu__prompt"
OUT = "cdna_kernels/" + NAME + ".s"

KA = dict(x=0, k=8, v=16, wq=24, wo=32, bx=40, wg=48, wu=56, wd=64, c=72, wmod=80, out=88, dbg=96, ws=104)


class K:
    def __init__(self, name, grid, block, lds, vgpr, sgpr=100):
        self.name, self.grid, self.block, self.lds, self.vgpr, self.sgpr = name, grid, block, lds, vgpr, sgpr
        self.L = []
    def __call__(self, s):
        for line in s.strip("\n").split("\n"):
            line = line.strip()
            if not line:
                continue
            if line.endswith(":"):
                self.L.append(line)
            else:
                self.L.append("    " + line)
    def text(self):
        t = f".globl {self.name}\n.p2align 8\n.type {self.name},@function\n{self.name}:\n"
        t += "\n".join(self.L) + "\n    s_endpgm\n"
        return t
    def desc(self):
        acc = (self.vgpr + 3) // 4 * 4
        return f""".p2align 6
.amdhsa_kernel {self.name}
  .amdhsa_next_free_vgpr {self.vgpr}
  .amdhsa_next_free_sgpr {self.sgpr}
  .amdhsa_accum_offset {acc}
  .amdhsa_group_segment_fixed_size 0
  .amdhsa_kernarg_size 112
  .amdhsa_user_sgpr_count 2
  .amdhsa_user_sgpr_kernarg_segment_ptr 1
  .amdhsa_system_sgpr_workgroup_id_x 1
.end_amdhsa_kernel
"""
    def launch(self):
        return f"; @launch kernel={self.name} grid=({self.grid},1,1) block=({self.block},1,1) lds={self.lds}"


def srd(k, d, base, nbytes, off=0):
    if off:
        k(f"s_add_u32 s{d}, s{base}, {off}")
        k(f"s_addc_u32 s{d+1}, s{base+1}, 0")
    else:
        k(f"s_mov_b32 s{d}, s{base}")
        k(f"s_mov_b32 s{d+1}, s{base+1}")
    k(f"s_mov_b32 s{d+2}, {nbytes}")
    k(f"s_mov_b32 s{d+3}, 0x00020000")


def rbf(k, v, tmp=None):
    k(f"v_cvt_pk_bf16_f32 {v}, {v}, {v}")
    k(f"v_lshlrev_b32 {v}, 16, {v}")


def mod_kernel():
    k = K("mod_kernel", 24, 1024, 8192, 72)
    k(f"""
    s_cmp_ge_u32 s2, 24
    s_cbranch_scc1 mod_done
    s_load_dwordx2 s[4:5], s[0:1], {KA['c']}
    s_load_dwordx2 s[6:7], s[0:1], {KA['wmod']}
    s_load_dwordx2 s[8:9], s[0:1], {KA['ws']}
    v_lshrrev_b32 v1, 6, v0
    v_and_b32 v2, 63, v0
    s_nop 0
    v_readfirstlane_b32 s10, v1
    s_waitcnt lgkmcnt(0)
    s_lshl_b32 s11, s10, 6
    s_add_u32 s4, s4, s11
    s_addc_u32 s5, s5, 0
    s_load_dwordx16 s[16:31], s[4:5], 0
    """)
    srd(k, 12, 6, 512 * 3072 * 2)
    srd(k, 36, 8, 3072 * 4, WS.mod)
    k(f"""
    s_mul_i32 s11, s10, {32*3072*2}
    s_lshl_b32 s33, s2, 8
    s_add_u32 s11, s11, s33
    v_lshlrev_b32 v3, 2, v2
    v_add_u32 v3, s11, v3
    """)
    for r in range(32):
        k(f"s_mov_b32 s33, {r*6144}")
        k(f"buffer_load_dword v{32+r}, v3, s[12:15], s33 offen")
    k("s_waitcnt lgkmcnt(0)")
    k("v_mov_b32 v4, 0\nv_mov_b32 v5, 0")
    for r in range(32):
        s = 16 + r // 2
        if r % 2 == 0:
            k(f"v_lshlrev_b32 v6, 16, s{s}")
        else:
            k(f"s_and_b32 s33, s{s}, 0xffff0000")
            k("v_mov_b32 v6, s33")
        k("""
        v_mul_f32 v7, 0xbfb8aa3b, v6
        v_exp_f32 v7, v7
        s_nop 0
        v_add_f32 v7, 1.0, v7
        v_rcp_f32 v7, v7
        s_nop 0
        v_mul_f32 v6, v6, v7
        """)
        rbf(k, "v6")
        k(f"s_waitcnt vmcnt({31-r})")
        k(f"v_lshlrev_b32 v8, 16, v{32+r}")
        k(f"v_and_b32 v9, 0xffff0000, v{32+r}")
        k("v_fmac_f32 v4, v6, v8")
        k("v_fmac_f32 v5, v6, v9")
    k("""
    v_lshlrev_b32 v10, 9, v1
    v_lshlrev_b32 v11, 3, v2
    v_add_u32 v10, v10, v11
    ds_write_b64 v10, v[4:5]
    s_waitcnt lgkmcnt(0)
    s_barrier
    v_cmp_gt_u32 vcc, 128, v0
    s_and_saveexec_b64 s[34:35], vcc
    s_cbranch_execz mod_done
    v_lshlrev_b32 v10, 2, v0
    """)
    for w in range(16):
        k(f"ds_read_b32 v{32+w}, v10 offset:{w*512}")
    k("s_waitcnt lgkmcnt(0)")
    k("v_mov_b32 v4, v32")
    for w in range(1, 16):
        k(f"v_add_f32 v4, v4, v{32+w}")
    rbf(k, "v4")
    k("""
    s_lshl_b32 s33, s2, 9
    v_add_u32 v10, s33, v10
    buffer_store_dword v4, v10, s[36:39], 0 offen
    mod_done:
    """)
    return k


def wave_sum(k, v, tmp, addr_regs):
    for a in addr_regs:
        k(f"ds_bpermute_b32 {tmp}, {a}, {v}")
        k("s_waitcnt lgkmcnt(0)")
        k(f"v_add_f32 {v}, {v}, {tmp}")


def ln_kernel(name, nsplit, sidx, cidx, gidx, dst_h, dst_x1):
    k = K(name, 512, 256, 0, 96)
    k(f"""
    s_cmp_ge_u32 s2, 512
    s_cbranch_scc1 {name}_done
    s_load_dwordx2 s[4:5], s[0:1], {KA['x']}
    s_load_dwordx2 s[8:9], s[0:1], {KA['ws']}
    v_lshrrev_b32 v1, 6, v0
    v_and_b32 v2, 63, v0
    s_lshl_b32 s3, s2, 2
    v_add_u32 v1, s3, v1            ; row
    s_waitcnt lgkmcnt(0)
    """)
    srd(k, 12, 4, 2048 * 512 * 2)
    srd(k, 16, 8, 3072 * 4, WS.mod)
    srd(k, 20, 8, 2048 * 512 * 2, dst_h)
    if nsplit:
        srd(k, 24, 8, 2048 * 512 * 2, dst_x1)
        srd(k, 28, 8, nsplit * 2048 * 512 * 4, WS.part)
    for i, m in enumerate([1, 2, 4, 8, 16, 32]):
        k(f"v_xor_b32 v{10+i}, {m}, v2")
        k(f"v_lshlrev_b32 v{10+i}, 2, v{10+i}")
    k("""
    v_lshlrev_b32 v3, 10, v1        ; row*1024 bytes (bf16 row)
    v_lshlrev_b32 v4, 4, v2
    v_add_u32 v3, v3, v4            ; + lane*16
    v_lshlrev_b32 v5, 1, v3
    v_lshlrev_b32 v6, 5, v2
    buffer_load_dwordx4 v[16:19], v3, s[12:15], 0 offen
    """)
    k(f"s_mov_b32 s33, {cidx*2048}")
    k(f"buffer_load_dwordx4 v[32:35], v6, s[16:19], s33 offen")
    k(f"buffer_load_dwordx4 v[36:39], v6, s[16:19], s33 offen offset:16")
    k(f"s_mov_b32 s33, {sidx*2048}")
    k(f"buffer_load_dwordx4 v[40:43], v6, s[16:19], s33 offen")
    k(f"buffer_load_dwordx4 v[44:47], v6, s[16:19], s33 offen offset:16")
    if nsplit:
        k(f"s_mov_b32 s33, {gidx*2048}")
        k(f"buffer_load_dwordx4 v[48:51], v6, s[16:19], s33 offen")
        k(f"buffer_load_dwordx4 v[52:55], v6, s[16:19], s33 offen offset:16")
        for s in range(nsplit):
            k(f"s_mov_b32 s33, {s*2048*512*4}")
            k(f"buffer_load_dwordx4 v[{64+8*(s%2)}:{67+8*(s%2)}], v5, s[28:31], s33 offen")
            k(f"buffer_load_dwordx4 v[{68+8*(s%2)}:{71+8*(s%2)}], v5, s[28:31], s33 offen offset:16")
            k("s_waitcnt vmcnt(0)")
            for j in range(8):
                if s == 0:
                    k(f"v_mov_b32 v{56+j}, v{64+j}")
                else:
                    k(f"v_add_f32 v{56+j}, v{56+j}, v{64+8*(s%2)+j}")
    k("s_waitcnt vmcnt(0)")
    for j in range(4):
        k(f"v_lshlrev_b32 v{20+2*j}, 16, v{16+j}")
        k(f"v_and_b32 v{21+2*j}, 0xffff0000, v{16+j}")
    if nsplit:
        for j in range(8):
            rbf(k, f"v{56+j}")
            k(f"v_mul_f32 v{56+j}, v{48+j}, v{56+j}")
            rbf(k, f"v{56+j}")
            k(f"v_add_f32 v{20+j}, v{20+j}, v{56+j}")
        for j in range(4):
            k(f"v_cvt_pk_bf16_f32 v{16+j}, v{20+2*j}, v{21+2*j}")
        k("buffer_store_dwordx4 v[16:19], v3, s[24:27], 0 offen")
        for j in range(4):
            k(f"v_lshlrev_b32 v{20+2*j}, 16, v{16+j}")
            k(f"v_and_b32 v{21+2*j}, 0xffff0000, v{16+j}")
    k("v_add_f32 v7, v20, v21")
    for j in range(2, 8):
        k(f"v_add_f32 v7, v7, v{20+j}")
    wave_sum(k, "v7", "v8", [f"v{10+i}" for i in range(6)])
    k("v_mul_f32 v7, 0x3b000000, v7")
    k("v_mov_b32 v9, 0")
    for j in range(8):
        k(f"v_sub_f32 v8, v{20+j}, v7")
        k("v_fmac_f32 v9, v8, v8")
    wave_sum(k, "v9", "v8", [f"v{10+i}" for i in range(6)])
    k("v_mul_f32 v9, 0x3b000000, v9")
    rbf(k, "v7")
    rbf(k, "v9")
    k("v_add_f32 v9, 0x3727c5ac, v9")
    rbf(k, "v9")
    k("v_sqrt_f32 v9, v9")
    k("s_nop 0")
    rbf(k, "v9")
    k("v_rcp_f32 v8, v9")
    k("s_nop 0")
    for j in range(8):
        k(f"v_sub_f32 v{20+j}, v{20+j}, v7")
        rbf(k, f"v{20+j}")
        k(f"v_mul_f32 v28, v{20+j}, v8")
        k(f"v_fma_f32 v29, -v28, v9, v{20+j}")
        k(f"v_fma_f32 v{20+j}, v29, v8, v28")
        rbf(k, f"v{20+j}")
        k(f"v_add_f32 v{32+j}, 1.0, v{32+j}")
        rbf(k, f"v{32+j}")
        k(f"v_mul_f32 v{20+j}, v{20+j}, v{32+j}")
        rbf(k, f"v{20+j}")
        k(f"v_add_f32 v{20+j}, v{20+j}, v{40+j}")
    for j in range(4):
        k(f"v_cvt_pk_bf16_f32 v{16+j}, v{20+2*j}, v{21+2*j}")
    k("buffer_store_dwordx4 v[16:19], v3, s[20:23], 0 offen")
    k(f"{name}_done:")
    return k


def gemm_kernel(name, act_off, lda, wkeys, ldw, N, K_total, nsplit, epi, out_off=None, ldo=None):
    TM, TN, TK = 128, 256, 64
    dual = len(wkeys) == 2
    tn_eff = 128 if dual else 256
    nbn = N // tn_eff
    nbm = 2048 // TM
    kper = K_total // nsplit
    nkt = kper // TK
    grid = nbm * nbn * nsplit
    ACT, BUF = 16384, 49152
    k = K(name, grid, 512, 2 * BUF, 200)
    k(f"""
    s_cmp_ge_u32 s2, {grid}
    s_cbranch_scc1 {name}_done
    s_load_dwordx2 s[4:5], s[0:1], {KA[wkeys[0]]}
    s_load_dwordx2 s[6:7], s[0:1], {KA[wkeys[-1]]}
    s_load_dwordx2 s[8:9], s[0:1], {KA['ws']}
    """)
    k("s_and_b32 s40, s2, 15")
    k("s_lshr_b32 s41, s2, 4")
    if nsplit > 1 and nbn & (nbn - 1) == 0:
        k(f"s_and_b32 s42, s41, {nbn-1}")
        k(f"s_lshr_b32 s43, s41, {nbn.bit_length()-1}")
    elif nsplit == 1:
        k("s_mov_b32 s42, s41")
        k("s_mov_b32 s43, 0")
    else:
        raise NotImplementedError
    k("s_waitcnt lgkmcnt(0)")
    srd(k, 12, 8, 2048 * lda * 2, act_off)
    srd(k, 16, 4, K_total * ldw * 2)
    srd(k, 20, 6, K_total * ldw * 2)
    k("""
    v_and_b32 v1, 63, v0            ; lane
    v_lshrrev_b32 v2, 6, v0         ; wave
    """)
    k(f"""
    v_lshrrev_b32 v3, 3, v0
    v_and_b32 v4, 7, v0
    s_lshl_b32 s44, s40, 7
    v_add_u32 v5, s44, v3
    s_mov_b32 s45, {lda*2}
    v_mul_lo_u32 v5, v5, s45
    v_lshlrev_b32 v6, 4, v4
    v_add_u32 v5, v5, v6
    s_mul_i32 s46, s43, {kper*2}
    v_add_u32 v10, s46, v5
    v_add_u32 v11, {64*lda*2}, v10
    """)
    k("""
    v_lshrrev_b32 v5, 1, v3
    v_and_b32 v5, 7, v5
    v_xor_b32 v5, v5, v4
    v_lshlrev_b32 v5, 4, v5
    v_lshlrev_b32 v6, 7, v3
    v_add_u32 v12, v5, v6
    """)
    if not dual:
        k(f"""
        v_lshrrev_b32 v3, 5, v0
        v_and_b32 v4, 31, v0
        s_mul_i32 s46, s43, {kper}
        v_add_u32 v5, s46, v3
        s_mov_b32 s45, {ldw*2}
        v_mul_lo_u32 v5, v5, s45
        v_lshlrev_b32 v6, 4, v4
        v_add_u32 v5, v5, v6
        s_lshl_b32 s46, s42, 9
        v_add_u32 v13, s46, v5
        """)
        for i in range(1, 4):
            k(f"v_add_u32 v{13+i}, {16*i*ldw*2}, v13")
        wrows = [16 * i for i in range(4)]
        wsrd = [16] * 4
        k(f"""
        v_and_b32 v5, 3, v3
        v_lshlrev_b32 v5, 2, v5
        v_xor_b32 v5, v5, v4
        v_lshlrev_b32 v5, 4, v5
        v_lshlrev_b32 v6, 9, v3
        v_add_u32 v17, v5, v6
        v_add_u32 v17, {ACT}, v17
        """)
        wlds = [8192 * i for i in range(4)]
    else:
        k(f"""
        v_lshrrev_b32 v3, 4, v0
        v_and_b32 v4, 15, v0
        s_mul_i32 s46, s43, {kper}
        v_add_u32 v5, s46, v3
        s_mov_b32 s45, {ldw*2}
        v_mul_lo_u32 v5, v5, s45
        v_lshlrev_b32 v6, 4, v4
        v_add_u32 v5, v5, v6
        s_lshl_b32 s46, s42, 8
        v_add_u32 v13, s46, v5
        v_add_u32 v14, {32*ldw*2}, v13
        v_mov_b32 v15, v13
        v_mov_b32 v16, v14
        """)
        wsrd = [16, 16, 20, 20]
        k(f"""
        v_and_b32 v5, 3, v3
        v_lshlrev_b32 v5, 2, v5
        v_xor_b32 v5, v5, v4
        v_lshlrev_b32 v5, 4, v5
        v_lshlrev_b32 v6, 9, v3
        v_add_u32 v17, v5, v6
        v_add_u32 v17, {ACT}, v17
        """)
        wlds = [0, 32 * 512, 256, 32 * 512 + 256]
    k(f"v_add_u32 v18, {BUF}, v12")
    k(f"v_add_u32 v19, {BUF}, v17")
    k("""
    v_and_b32 v3, 31, v1
    v_and_b32 v4, 1, v2
    v_lshlrev_b32 v4, 6, v4
    v_add_u32 v4, v4, v3            ; m
    v_lshrrev_b32 v5, 1, v4
    v_and_b32 v5, 7, v5             ; swz
    v_lshrrev_b32 v6, 5, v1         ; h
    v_lshlrev_b32 v7, 7, v4         ; m*128
    """)
    for ks in range(4):
        k(f"v_add_u32 v8, {2*ks}, v6")
        k("v_xor_b32 v8, v8, v5")
        k("v_lshlrev_b32 v8, 4, v8")
        k(f"v_add_u32 v{20+ks}, v7, v8")
    k("""
    v_lshrrev_b32 v3, 4, v1         ; g
    v_and_b32 v4, 15, v1            ; i
    v_lshrrev_b32 v5, 1, v2         ; wn
    """)
    if not dual:
        k("v_lshlrev_b32 v5, 3, v5")
    else:
        k("v_lshlrev_b32 v5, 2, v5")
    k("""
    v_and_b32 v6, 1, v3
    v_lshlrev_b32 v6, 1, v6
    v_add_u32 v5, v5, v6
    v_and_b32 v6, 3, v4
    v_lshrrev_b32 v6, 1, v6
    v_add_u32 v5, v5, v6
    v_lshrrev_b32 v6, 2, v4         ; i>>2
    v_lshrrev_b32 v7, 1, v3
    v_lshlrev_b32 v7, 3, v7
    v_add_u32 v7, v7, v6            ; k row
    v_lshlrev_b32 v7, 9, v7
    v_and_b32 v8, 1, v4
    v_lshlrev_b32 v8, 3, v8
    v_add_u32 v7, v7, v8
    v_lshlrev_b32 v6, 2, v6         ; swz = (i>>2)<<2
    """)
    nbadd = 4 if not dual else 16
    for nb in range(2):
        k(f"v_add_u32 v8, {nb*nbadd}, v5")
        k("v_xor_b32 v8, v8, v6")
        k("v_lshlrev_b32 v8, 4, v8")
        k("v_add_u32 v8, v8, v7")
        k(f"v_add_u32 v{24+nb}, {ACT}, v8")
        k(f"v_add_u32 v{26+nb}, {ACT+BUF}, v8")
    for r in range(64):
        k(f"v_mov_b32 v{64+r}, 0")
    def issue_loads(kt_sreg_act, kt_sreg_w):
        k(f"buffer_load_dwordx4 v[128:131], v10, s[12:15], {kt_sreg_act} offen")
        k(f"buffer_load_dwordx4 v[132:135], v11, s[12:15], {kt_sreg_act} offen")
        for i in range(4):
            k(f"buffer_load_dwordx4 v[{136+4*i}:{139+4*i}], v{13+i}, s[{wsrd[i]}:{wsrd[i]+3}], {kt_sreg_w} offen")
    def write_lds(buf):
        a, w = (12, 17) if buf == 0 else (18, 19)
        k(f"ds_write_b128 v{a}, v[128:131]")
        k(f"ds_write_b128 v{a}, v[132:135] offset:8192")
        for i in range(4):
            k(f"ds_write_b128 v{w}, v[{136+4*i}:{139+4*i}] offset:{wlds[i]}")
    def compute(buf):
        for ks in range(4):
            for mb in range(2):
                k(f"ds_read_b128 v[{152+ks*8+mb*4}:{155+ks*8+mb*4}], v{20+ks} offset:{buf*BUF+mb*4096}")
            for nb in range(2):
                for s in range(2):
                    r = 32 + ks * 8 + nb * 4 + s * 2
                    k(f"ds_read_b64_tr_b16 v[{r}:{r+1}], v{24+2*buf+nb} offset:{(ks*16+s*4)*512}")
        for ks in range(4):
            k(f"s_waitcnt lgkmcnt({min(15,(3-ks)*6)})")
            for nb in range(2):
                for mb in range(2):
                    a = 32 + ks * 8 + nb * 4
                    b = 152 + ks * 8 + mb * 4
                    d = 64 + (nb * 2 + mb) * 16
                    k(f"v_mfma_f32_32x32x16_bf16 v[{d}:{d+15}], v[{a}:{a+3}], v[{b}:{b+3}], v[{d}:{d+15}]")
    k("s_mov_b32 s47, 0")
    k("s_mov_b32 s48, 0")
    issue_loads("s47", "s48")
    k("s_waitcnt vmcnt(0)")
    write_lds(0)
    k("s_waitcnt lgkmcnt(0)")
    k("s_barrier")
    assert nkt % 2 == 0
    k("s_mov_b32 s49, 0")
    k(f"{name}_loop:")
    for half in range(2):
        k(f"s_add_u32 s47, s47, {TK*2}")
        k(f"s_add_u32 s48, s48, {TK*ldw*2}")
        issue_loads("s47", "s48")
        compute(half)
        k("s_waitcnt vmcnt(0)")
        write_lds(1 - half)
        k("s_waitcnt lgkmcnt(0)")
        k("s_barrier")
    k(f"""
    s_add_u32 s49, s49, 2
    s_cmp_lt_u32 s49, {nkt}
    s_cbranch_scc1 {name}_loop
    s_nop 7
    s_nop 7
    """)
    k("""
    v_and_b32 v3, 31, v1
    v_and_b32 v4, 1, v2
    v_lshlrev_b32 v4, 6, v4
    v_add_u32 v4, v4, v3
    s_lshl_b32 s44, s40, 7
    v_add_u32 v4, s44, v4           ; m (mb=0)
    v_lshrrev_b32 v5, 5, v1
    v_lshlrev_b32 v5, 2, v5         ; 4h
    v_lshrrev_b32 v6, 1, v2         ; wn
    """)
    if epi == "bf16":
        srd(k, 24, 8, 2048 * ldo * 2, out_off)
        k(f"""
        v_lshlrev_b32 v6, 6, v6
        v_add_u32 v5, v5, v6
        s_lshl_b32 s46, s42, 8
        v_add_u32 v5, s46, v5           ; n
        s_mov_b32 s45, {ldo}
        v_mul_lo_u32 v4, v4, s45
        v_add_u32 v4, v4, v5
        v_lshlrev_b32 v4, 1, v4
        v_add_u32 v5, {32*ldo*2}, v4
        """)
        for nb in range(2):
            for mb in range(2):
                d = 64 + (nb * 2 + mb) * 16
                for g4 in range(4):
                    k(f"v_cvt_pk_bf16_f32 v8, v{d+4*g4}, v{d+4*g4+1}")
                    k(f"v_cvt_pk_bf16_f32 v9, v{d+4*g4+2}, v{d+4*g4+3}")
                    k(f"buffer_store_dwordx2 v[8:9], v{4+mb}, s[24:27], 0 offen offset:{(nb*32+8*g4)*2}")
                    k("s_nop 1")
    elif epi == "part":
        srd(k, 24, 8, nsplit * 2048 * 512 * 4, WS.part)
        k(f"""
        v_lshlrev_b32 v6, 6, v6
        v_add_u32 v5, v5, v6
        s_lshl_b32 s46, s42, 8
        v_add_u32 v5, s46, v5           ; n
        v_lshlrev_b32 v4, 9, v4
        v_add_u32 v4, v4, v5
        v_lshlrev_b32 v4, 2, v4
        s_mul_i32 s46, s43, {2048*512*4}
        v_add_u32 v4, s46, v4
        v_add_u32 v5, {32*512*4}, v4
        """)
        for nb in range(2):
            for mb in range(2):
                d = 64 + (nb * 2 + mb) * 16
                for g4 in range(4):
                    k(f"buffer_store_dwordx4 v[{d+4*g4}:{d+4*g4+3}], v{4+mb}, s[24:27], 0 offen offset:{(nb*32+8*g4)*4}")
    elif epi == "geglu":
        srd(k, 24, 8, 2048 * ldo * 2, out_off)
        k(f"""
        v_lshlrev_b32 v6, 5, v6
        v_add_u32 v5, v5, v6
        s_lshl_b32 s46, s42, 7
        v_add_u32 v5, s46, v5           ; n
        s_mov_b32 s45, {ldo}
        v_mul_lo_u32 v4, v4, s45
        v_add_u32 v4, v4, v5
        v_lshlrev_b32 v4, 1, v4
        v_add_u32 v5, {32*ldo*2}, v4
        s_mov_b32 s45, 0x3d372713       ; 0.044715
        s_mov_b32 s46, 0x40135761
        """)
        for mb in range(2):
            dg = 64 + (0 * 2 + mb) * 16
            du = 64 + (1 * 2 + mb) * 16
            for r in range(16):
                g, u = f"v{dg+r}", f"v{du+r}"
                rbf(k, g)
                rbf(k, u)
                k(f"v_mul_f32 v8, {g}, {g}")
                k(f"v_mul_f32 v8, v8, {g}")
                k(f"v_fma_f32 v8, v8, s45, {g}")
                k(f"v_mul_f32 v8, s46, v8")
                k("v_sub_f32 v8, 0, v8")
                k("v_exp_f32 v8, v8")
                k("s_nop 0")
                k("v_add_f32 v8, 1.0, v8")
                k("v_rcp_f32 v8, v8")
                k("s_nop 0")
                k(f"v_mul_f32 {g}, {g}, v8")
                rbf(k, g)
                k(f"v_mul_f32 {g}, {g}, {u}")
            for g4 in range(4):
                k(f"v_cvt_pk_bf16_f32 v8, v{dg+4*g4}, v{dg+4*g4+1}")
                k(f"v_cvt_pk_bf16_f32 v9, v{dg+4*g4+2}, v{dg+4*g4+3}")
                k(f"buffer_store_dwordx2 v[8:9], v{4+mb}, s[24:27], 0 offen offset:{(8*g4)*2}")
                k("s_nop 1")
    k(f"{name}_done:")
    return k


def final_kernel(nsplit):
    name = "final_kernel"
    k = K(name, 512, 256, 0, 96)
    k(f"""
    s_cmp_ge_u32 s2, 512
    s_cbranch_scc1 {name}_done
    s_load_dwordx2 s[4:5], s[0:1], {KA['out']}
    s_load_dwordx2 s[8:9], s[0:1], {KA['ws']}
    v_lshrrev_b32 v1, 6, v0
    v_and_b32 v2, 63, v0
    s_lshl_b32 s3, s2, 2
    v_add_u32 v1, s3, v1            ; row
    s_waitcnt lgkmcnt(0)
    """)
    srd(k, 12, 4, 2048 * 512 * 2)
    srd(k, 16, 8, 3072 * 4, WS.mod)
    srd(k, 24, 8, 2048 * 512 * 2, WS.x1)
    srd(k, 28, 8, nsplit * 2048 * 512 * 4, WS.part)
    k("""
    v_lshlrev_b32 v3, 10, v1
    v_lshlrev_b32 v4, 4, v2
    v_add_u32 v3, v3, v4
    v_lshlrev_b32 v5, 1, v3
    v_lshlrev_b32 v6, 5, v2
    buffer_load_dwordx4 v[16:19], v3, s[24:27], 0 offen
    """)
    k(f"s_mov_b32 s33, {5*2048}")
    k(f"buffer_load_dwordx4 v[48:51], v6, s[16:19], s33 offen")
    k(f"buffer_load_dwordx4 v[52:55], v6, s[16:19], s33 offen offset:16")
    for s in range(nsplit):
        k(f"s_mov_b32 s33, {s*2048*512*4}")
        k(f"buffer_load_dwordx4 v[{64+8*(s%2)}:{67+8*(s%2)}], v5, s[28:31], s33 offen")
        k(f"buffer_load_dwordx4 v[{68+8*(s%2)}:{71+8*(s%2)}], v5, s[28:31], s33 offen offset:16")
        k("s_waitcnt vmcnt(0)")
        for j in range(8):
            if s == 0:
                k(f"v_mov_b32 v{56+j}, v{64+j}")
            else:
                k(f"v_add_f32 v{56+j}, v{56+j}, v{64+8*(s%2)+j}")
    for j in range(4):
        k(f"v_lshlrev_b32 v{20+2*j}, 16, v{16+j}")
        k(f"v_and_b32 v{21+2*j}, 0xffff0000, v{16+j}")
    for j in range(8):
        rbf(k, f"v{56+j}")
        k(f"v_mul_f32 v{56+j}, v{48+j}, v{56+j}")
        rbf(k, f"v{56+j}")
        k(f"v_add_f32 v{20+j}, v{20+j}, v{56+j}")
    for j in range(4):
        k(f"v_cvt_pk_bf16_f32 v{16+j}, v{20+2*j}, v{21+2*j}")
    k("buffer_store_dwordx4 v[16:19], v3, s[12:15], 0 offen")
    k(f"{name}_done:")
    return k


def attn_kernel():
    name = "attn_kernel"
    k = K(name, 256, 512, 65536, 256)
    k(f"""
    s_cmp_ge_u32 s2, 256
    s_cbranch_scc1 {name}_done
    s_load_dwordx2 s[4:5], s[0:1], {KA['k']}
    s_load_dwordx2 s[6:7], s[0:1], {KA['v']}
    s_load_dwordx2 s[8:9], s[0:1], {KA['ws']}
    s_and_b32 s40, s2, 7
    s_lshr_b32 s41, s2, 3
    s_and_b32 s42, s41, 3
    s_lshr_b32 s43, s41, 2          ; q block (0..7)
    s_lshl_b32 s44, s40, 2
    s_add_u32 s44, s44, s42         ; q head
    s_waitcnt lgkmcnt(0)
    s_lshl_b32 s45, s40, 19
    s_add_u32 s4, s4, s45
    s_addc_u32 s5, s5, 0
    s_add_u32 s6, s6, s45
    s_addc_u32 s7, s7, 0
    """)
    srd(k, 12, 4, 2048 * 128 * 2)
    srd(k, 16, 6, 2048 * 128 * 2)
    srd(k, 20, 8, 2048 * 4096 * 2, WS.q)
    srd(k, 24, 8, 2048 * 4096 * 2, WS.o)
    k("""
    v_and_b32 v1, 63, v0
    v_lshrrev_b32 v2, 6, v0
    v_and_b32 v3, 31, v1
    v_lshrrev_b32 v4, 5, v1          ; h
    v_lshlrev_b32 v5, 5, v2
    v_add_u32 v5, v5, v3
    s_lshl_b32 s45, s43, 8
    v_add_u32 v5, s45, v5
    v_lshlrev_b32 v5, 13, v5
    s_lshl_b32 s45, s44, 8
    v_add_u32 v5, s45, v5
    v_lshlrev_b32 v6, 4, v4
    v_add_u32 v6, v5, v6
    """)
    for ds in range(8):
        k(f"buffer_load_dwordx4 v[{32+4*ds}:{35+4*ds}], v6, s[20:23], 0 offen offset:{ds*32}")
    k("""
    v_lshrrev_b32 v7, 4, v0
    v_and_b32 v8, 15, v0
    v_lshlrev_b32 v9, 8, v7
    v_lshlrev_b32 v10, 4, v8
    v_add_u32 v10, v9, v10
    v_and_b32 v11, 15, v7
    v_xor_b32 v11, v11, v8
    v_lshlrev_b32 v11, 4, v11
    v_add_u32 v11, v9, v11
    v_and_b32 v12, 3, v7
    v_lshlrev_b32 v12, 2, v12
    v_xor_b32 v12, v12, v8
    v_lshlrev_b32 v12, 4, v12
    v_add_u32 v12, v9, v12
    v_add_u32 v12, 0x4000, v12
    v_and_b32 v13, 15, v1
    v_lshlrev_b32 v14, 8, v3
    """)
    for ds in range(8):
        k(f"v_add_u32 v15, {2*ds}, v4")
        k("v_xor_b32 v15, v15, v13")
        k("v_lshlrev_b32 v15, 4, v15")
        k(f"v_add_u32 v{16+ds}, v14, v15")
    k("""
    v_lshrrev_b32 v7, 4, v1          ; g
    v_and_b32 v8, 15, v1             ; i
    v_lshrrev_b32 v9, 2, v8          ; i>>2
    v_lshlrev_b32 v13, 2, v4
    v_add_u32 v13, v13, v9           ; key
    v_lshlrev_b32 v13, 8, v13
    v_and_b32 v14, 1, v8
    v_lshlrev_b32 v14, 3, v14
    v_add_u32 v13, v13, v14          ; + (i&1)*8
    v_add_u32 v13, 0x4000, v13
    v_and_b32 v14, 1, v7
    v_lshlrev_b32 v14, 1, v14
    v_and_b32 v15, 3, v8
    v_lshrrev_b32 v15, 1, v15
    v_add_u32 v14, v14, v15
    v_lshlrev_b32 v9, 2, v9
    """)
    for db in range(4):
        k(f"v_add_u32 v15, {4*db}, v14")
        k("v_xor_b32 v15, v15, v9")
        k("v_lshlrev_b32 v15, 4, v15")
        k(f"v_add_u32 v{24+db}, v13, v15")
    for r in range(64):
        k(f"v_mov_b32 v{64+r}, 0")
    k("v_mov_b32 v28, 0xff800000")
    k("v_mov_b32 v29, 0")
    k("s_mov_b32 s46, 0x3e0293ee")
    def issue_loads():
        k("buffer_load_dwordx4 v[160:163], v10, s[12:15], s47 offen")
        k("buffer_load_dwordx4 v[164:167], v10, s[12:15], s47 offen offset:8192") if False else None
        k("v_add_u32 v30, 0x2000, v10")
        k("buffer_load_dwordx4 v[164:167], v30, s[12:15], s47 offen")
        k("buffer_load_dwordx4 v[168:171], v10, s[16:19], s47 offen")
        k("buffer_load_dwordx4 v[172:175], v30, s[16:19], s47 offen")
    def write_lds(buf):
        o = buf * 32768
        k(f"ds_write_b128 v11, v[160:163] offset:{o}")
        k(f"ds_write_b128 v11, v[164:167] offset:{o+8192}")
        k(f"ds_write_b128 v12, v[168:171] offset:{o}")
        k(f"ds_write_b128 v12, v[172:175] offset:{o+8192}")
    def compute(buf):
        o = buf * 32768
        for kb in range(2):
            for ds in range(8):
                r = 192 + (kb * 8 + ds) % 8 * 4
                k(f"ds_read_b128 v[{192+ds*4}:{195+ds*4}], v{16+ds} offset:{o + kb*8192}")
            for ds in range(8):
                k(f"s_waitcnt lgkmcnt({7-ds})")
                d = 128 + kb * 16
                c = "0" if ds == 0 else f"v[{d}:{d+15}]"
                k(f"v_mfma_f32_32x32x16_bf16 v[{d}:{d+15}], v[{192+ds*4}:{195+ds*4}], v[{32+4*ds}:{35+4*ds}], {c}")
        k("s_nop 7\ns_nop 7")
        k("v_max_f32 v30, v128, v129")
        for r in range(2, 32):
            k(f"v_max_f32 v30, v30, v{128+r}")
        k("v_mov_b32 v31, v30")
        k("s_nop 1")
        k("v_permlane32_swap_b32 v30, v31")
        k("v_max_f32 v30, v30, v31")
        k("v_mul_f32 v30, s46, v30")
        k("v_max_f32 v30, v30, v28")
        k("v_sub_f32 v31, v28, v30")
        k("v_exp_f32 v31, v31")
        k("v_mov_b32 v28, v30")
        k("s_nop 0")
        k("v_mul_f32 v29, v29, v31")
        for r in range(32):
            k(f"v_fma_f32 v{128+r}, v{128+r}, s46, -v30")
        for r in range(32):
            k(f"v_exp_f32 v{128+r}, v{128+r}")
        for r in range(64):
            k(f"v_mul_f32 v{64+r}, v{64+r}, v31")
        for r in range(32):
            k(f"v_add_f32 v29, v29, v{128+r}")
        for r in range(16):
            k(f"v_cvt_pk_bf16_f32 v{176+r}, v{128+2*r}, v{129+2*r}")
        for t in range(4):
            for db in range(4):
                for s in range(2):
                    r = 224 + db * 4 + s * 2
                    k(f"ds_read_b64_tr_b16 v[{r}:{r+1}], v{24+db} offset:{o + (16*t+8*s)*256 - 0}")
            for db in range(4):
                k(f"s_waitcnt lgkmcnt({(3-db)*2})")
                d = 64 + db * 16
                k(f"v_mfma_f32_32x32x16_bf16 v[{d}:{d+15}], v[{224+db*4}:{227+db*4}], v[{176+4*t}:{179+4*t}], v[{d}:{d+15}]")
    k("s_mov_b32 s47, 0")
    issue_loads()
    k("s_waitcnt vmcnt(0)")
    write_lds(0)
    k("s_waitcnt lgkmcnt(0)")
    k("s_barrier")
    k("s_mov_b32 s49, 0")
    k(f"{name}_loop:")
    for half in range(2):
        k("s_add_u32 s47, s47, 16384")
        issue_loads()
        compute(half)
        k("s_waitcnt vmcnt(0)")
        write_lds(1 - half)
        k("s_waitcnt lgkmcnt(0)")
        k("s_barrier")
    k(f"""
    s_add_u32 s49, s49, 2
    s_cmp_lt_u32 s49, 32
    s_cbranch_scc1 {name}_loop
    s_nop 7
    s_nop 7
    v_mov_b32 v31, v29
    s_nop 1
    v_permlane32_swap_b32 v29, v31
    v_add_f32 v29, v29, v31
    v_rcp_f32 v29, v29
    v_lshlrev_b32 v6, 3, v4
    v_add_u32 v6, v5, v6
    """)
    for db in range(4):
        for g4 in range(4):
            d = 64 + db * 16 + g4 * 4
            for j in range(4):
                k(f"v_mul_f32 v{d+j}, v{d+j}, v29")
            k(f"v_cvt_pk_bf16_f32 v8, v{d}, v{d+1}")
            k(f"v_cvt_pk_bf16_f32 v9, v{d+2}, v{d+3}")
            k(f"buffer_store_dwordx2 v[8:9], v6, s[24:27], 0 offen offset:{(db*32+g4*8)*2}")
            k("s_nop 1")
    k(f"{name}_done:")
    return k


def main():
    ks = [
        mod_kernel(),
        ln_kernel("ln1_kernel", 0, 0, 1, None, WS.h2, None),
        gemm_kernel("qproj_kernel", WS.h2, 512, ["wq"], 4096, 4096, 512, 1, "bf16", WS.q, 4096),
        attn_kernel(),
        gemm_kernel("wo_kernel", WS.o, 4096, ["wo"], 512, 512, 4096, 8, "part"),
        ln_kernel("ln2_kernel", 8, 3, 4, 2, WS.h2, WS.x1),
        gemm_kernel("gateup_kernel", WS.h2, 512, ["wg", "wu"], 1792, 1792, 512, 1, "geglu", WS.hh, 1792),
        gemm_kernel("down_kernel", WS.hh, 1792, ["wd"], 512, 512, 1792, 7, "part"),
        final_kernel(7),
    ]
    hdr = open("cdna_kernels/" + NAME + ".s.ref").read().split("\n")
    top = [l for l in hdr if l.startswith(";") and "@launch" not in l]
    s = "\n".join(top) + "\n"
    s += "\n".join(k.launch() for k in ks) + "\n"
    s += '.amdgcn_target "amdgcn-amd-amdhsa--gfx950"\n.text\n'
    for k in ks:
        s += k.text()
    s += '.section .rodata,"a"\n'
    for k in ks:
        s += k.desc()
    open(OUT, "w").write(s)
    print("wrote", OUT, len(s))


if __name__ == "__main__":
    main()
```

```python
import sys, os
sys.path.insert(0, os.path.dirname(__file__))
from layout import WS

STAMP = int(os.environ.get("STAMP", "0"))
NAME = "adaLN_cond__gqa_block_cached__glu_gated_geglu__prompt"
OUT = "cdna_kernels/" + NAME + ".s"

KA = dict(x=0, k=8, v=16, wq=24, wo=32, bx=40, wg=48, wu=56, wd=64, c=72, wmod=80, out=88, dbg=96, ws=104)


class K:
    def __init__(self, name, grid, block, lds, vgpr, sgpr=100):
        self.name, self.grid, self.block, self.lds, self.vgpr, self.sgpr = name, grid, block, lds, vgpr, sgpr
        self.L = []
    def __call__(self, s):
        for line in s.strip("\n").split("\n"):
            line = line.strip()
            if not line:
                continue
            if line.endswith(":"):
                self.L.append(line)
            else:
                self.L.append("    " + line)
    def text(self):
        t = f".globl {self.name}\n.p2align 8\n.type {self.name},@function\n{self.name}:\n"
        t += "\n".join(self.L) + "\n    s_endpgm\n"
        return t
    def desc(self):
        acc = (self.vgpr + 3) // 4 * 4
        return f""".p2align 6
.amdhsa_kernel {self.name}
  .amdhsa_next_free_vgpr {self.vgpr}
  .amdhsa_next_free_sgpr {self.sgpr}
  .amdhsa_accum_offset {acc}
  .amdhsa_group_segment_fixed_size 0
  .amdhsa_kernarg_size 112
  .amdhsa_user_sgpr_count 2
  .amdhsa_user_sgpr_kernarg_segment_ptr 1
  .amdhsa_system_sgpr_workgroup_id_x 1
.end_amdhsa_kernel
"""
    def launch(self):
        return f"; @launch kernel={self.name} grid=({self.grid},1,1) block=({self.block},1,1) lds={self.lds}"


def srd(k, d, base, nbytes, off=0):
    if off:
        k(f"s_add_u32 s{d}, s{base}, {off}")
        k(f"s_addc_u32 s{d+1}, s{base+1}, 0")
    else:
        k(f"s_mov_b32 s{d}, s{base}")
        k(f"s_mov_b32 s{d+1}, s{base+1}")
    k(f"s_mov_b32 s{d+2}, {nbytes}")
    k(f"s_mov_b32 s{d+3}, 0x00020000")


def rbf(k, v, tmp=None):
    k(f"v_cvt_pk_bf16_f32 {v}, {v}, {v}")
    k(f"v_lshlrev_b32 {v}, 16, {v}")


def mod_kernel():
    k = K("mod_kernel", 24, 1024, 8192, 72)
    k(f"""
    s_cmp_ge_u32 s2, 24
    s_cbranch_scc1 mod_done
    s_load_dwordx2 s[4:5], s[0:1], {KA['c']}
    s_load_dwordx2 s[6:7], s[0:1], {KA['wmod']}
    s_load_dwordx2 s[8:9], s[0:1], {KA['ws']}
    v_lshrrev_b32 v1, 6, v0
    v_and_b32 v2, 63, v0
    s_nop 0
    v_readfirstlane_b32 s10, v1
    s_waitcnt lgkmcnt(0)
    s_lshl_b32 s11, s10, 6
    s_add_u32 s4, s4, s11
    s_addc_u32 s5, s5, 0
    s_load_dwordx16 s[16:31], s[4:5], 0
    """)
    srd(k, 12, 6, 512 * 3072 * 2)
    srd(k, 36, 8, 3072 * 4, WS.mod)
    k(f"""
    s_mul_i32 s11, s10, {32*3072*2}
    s_lshl_b32 s33, s2, 8
    s_add_u32 s11, s11, s33
    v_lshlrev_b32 v3, 2, v2
    v_add_u32 v3, s11, v3
    """)
    for r in range(32):
        k(f"s_mov_b32 s33, {r*6144}")
        k(f"buffer_load_dword v{32+r}, v3, s[12:15], s33 offen")
    k("s_waitcnt lgkmcnt(0)")
    k("v_mov_b32 v4, 0\nv_mov_b32 v5, 0")
    for r in range(32):
        s = 16 + r // 2
        if r % 2 == 0:
            k(f"v_lshlrev_b32 v6, 16, s{s}")
        else:
            k(f"s_and_b32 s33, s{s}, 0xffff0000")
            k("v_mov_b32 v6, s33")
        k("""
        v_mul_f32 v7, 0xbfb8aa3b, v6
        v_exp_f32 v7, v7
        s_nop 0
        v_add_f32 v7, 1.0, v7
        v_rcp_f32 v7, v7
        s_nop 0
        v_mul_f32 v6, v6, v7
        """)
        rbf(k, "v6")
        k(f"s_waitcnt vmcnt({31-r})")
        k(f"v_lshlrev_b32 v8, 16, v{32+r}")
        k(f"v_and_b32 v9, 0xffff0000, v{32+r}")
        k("v_fmac_f32 v4, v6, v8")
        k("v_fmac_f32 v5, v6, v9")
    k("""
    v_lshlrev_b32 v10, 9, v1
    v_lshlrev_b32 v11, 3, v2
    v_add_u32 v10, v10, v11
    ds_write_b64 v10, v[4:5]
    s_waitcnt lgkmcnt(0)
    s_barrier
    v_cmp_gt_u32 vcc, 128, v0
    s_and_saveexec_b64 s[34:35], vcc
    s_cbranch_execz mod_done
    v_lshlrev_b32 v10, 2, v0
    """)
    for w in range(16):
        k(f"ds_read_b32 v{32+w}, v10 offset:{w*512}")
    k("s_waitcnt lgkmcnt(0)")
    k("v_mov_b32 v4, v32")
    for w in range(1, 16):
        k(f"v_add_f32 v4, v4, v{32+w}")
    rbf(k, "v4")
    k("""
    s_lshl_b32 s33, s2, 9
    v_add_u32 v10, s33, v10
    buffer_store_dword v4, v10, s[36:39], 0 offen
    mod_done:
    """)
    return k


def wave_sum(k, v, tmp, addr_regs):
    for a in addr_regs:
        k(f"ds_bpermute_b32 {tmp}, {a}, {v}")
        k("s_waitcnt lgkmcnt(0)")
        k(f"v_add_f32 {v}, {v}, {tmp}")


def ln_kernel(name, nsplit, sidx, cidx, gidx, dst_h, dst_x1):
    k = K(name, 512, 256, 0, 96)
    k(f"""
    s_cmp_ge_u32 s2, 512
    s_cbranch_scc1 {name}_done
    s_load_dwordx2 s[4:5], s[0:1], {KA['x']}
    s_load_dwordx2 s[8:9], s[0:1], {KA['ws']}
    v_lshrrev_b32 v1, 6, v0
    v_and_b32 v2, 63, v0
    s_lshl_b32 s3, s2, 2
    v_add_u32 v1, s3, v1            ; row
    s_waitcnt lgkmcnt(0)
    """)
    srd(k, 12, 4, 2048 * 512 * 2)
    srd(k, 16, 8, 3072 * 4, WS.mod)
    srd(k, 20, 8, 2048 * 512 * 2, dst_h)
    if nsplit:
        srd(k, 24, 8, 2048 * 512 * 2, dst_x1)
        srd(k, 28, 8, nsplit * 2048 * 512 * 4, WS.part)
    for i, m in enumerate([1, 2, 4, 8, 16, 32]):
        k(f"v_xor_b32 v{10+i}, {m}, v2")
        k(f"v_lshlrev_b32 v{10+i}, 2, v{10+i}")
    k("""
    v_lshlrev_b32 v3, 10, v1        ; row*1024 bytes (bf16 row)
    v_lshlrev_b32 v4, 4, v2
    v_add_u32 v3, v3, v4            ; + lane*16
    v_lshlrev_b32 v5, 1, v3
    v_lshlrev_b32 v6, 5, v2
    buffer_load_dwordx4 v[16:19], v3, s[12:15], 0 offen
    """)
    k(f"s_mov_b32 s33, {cidx*2048}")
    k(f"buffer_load_dwordx4 v[32:35], v6, s[16:19], s33 offen")
    k(f"buffer_load_dwordx4 v[36:39], v6, s[16:19], s33 offen offset:16")
    k(f"s_mov_b32 s33, {sidx*2048}")
    k(f"buffer_load_dwordx4 v[40:43], v6, s[16:19], s33 offen")
    k(f"buffer_load_dwordx4 v[44:47], v6, s[16:19], s33 offen offset:16")
    if nsplit:
        k(f"s_mov_b32 s33, {gidx*2048}")
        k(f"buffer_load_dwordx4 v[48:51], v6, s[16:19], s33 offen")
        k(f"buffer_load_dwordx4 v[52:55], v6, s[16:19], s33 offen offset:16")
        for s in range(nsplit):
            k(f"s_mov_b32 s33, {s*2048*512*4}")
            k(f"buffer_load_dwordx4 v[{64+8*(s%2)}:{67+8*(s%2)}], v5, s[28:31], s33 offen")
            k(f"buffer_load_dwordx4 v[{68+8*(s%2)}:{71+8*(s%2)}], v5, s[28:31], s33 offen offset:16")
            k("s_waitcnt vmcnt(0)")
            for j in range(8):
                if s == 0:
                    k(f"v_mov_b32 v{56+j}, v{64+j}")
                else:
                    k(f"v_add_f32 v{56+j}, v{56+j}, v{64+8*(s%2)+j}")
    k("s_waitcnt vmcnt(0)")
    for j in range(4):
        k(f"v_lshlrev_b32 v{20+2*j}, 16, v{16+j}")
        k(f"v_and_b32 v{21+2*j}, 0xffff0000, v{16+j}")
    if nsplit:
        for j in range(8):
            rbf(k, f"v{56+j}")
            k(f"v_mul_f32 v{56+j}, v{48+j}, v{56+j}")
            rbf(k, f"v{56+j}")
            k(f"v_add_f32 v{20+j}, v{20+j}, v{56+j}")
        for j in range(4):
            k(f"v_cvt_pk_bf16_f32 v{16+j}, v{20+2*j}, v{21+2*j}")
        k("buffer_store_dwordx4 v[16:19], v3, s[24:27], 0 offen")
        for j in range(4):
            k(f"v_lshlrev_b32 v{20+2*j}, 16, v{16+j}")
            k(f"v_and_b32 v{21+2*j}, 0xffff0000, v{16+j}")
    k("v_add_f32 v7, v20, v21")
    for j in range(2, 8):
        k(f"v_add_f32 v7, v7, v{20+j}")
    wave_sum(k, "v7", "v8", [f"v{10+i}" for i in range(6)])
    k("v_mul_f32 v7, 0x3b000000, v7")
    k("v_mov_b32 v9, 0")
    for j in range(8):
        k(f"v_sub_f32 v8, v{20+j}, v7")
        k("v_fmac_f32 v9, v8, v8")
    wave_sum(k, "v9", "v8", [f"v{10+i}" for i in range(6)])
    k("v_mul_f32 v9, 0x3b000000, v9")
    rbf(k, "v7")
    rbf(k, "v9")
    k("v_add_f32 v9, 0x3727c5ac, v9")
    rbf(k, "v9")
    k("v_sqrt_f32 v9, v9")
    k("s_nop 0")
    rbf(k, "v9")
    k("v_rcp_f32 v8, v9")
    k("s_nop 0")
    for j in range(8):
        k(f"v_sub_f32 v{20+j}, v{20+j}, v7")
        rbf(k, f"v{20+j}")
        k(f"v_mul_f32 v28, v{20+j}, v8")
        k(f"v_fma_f32 v29, -v28, v9, v{20+j}")
        k(f"v_fma_f32 v{20+j}, v29, v8, v28")
        rbf(k, f"v{20+j}")
        k(f"v_add_f32 v{32+j}, 1.0, v{32+j}")
        rbf(k, f"v{32+j}")
        k(f"v_mul_f32 v{20+j}, v{20+j}, v{32+j}")
        rbf(k, f"v{20+j}")
        k(f"v_add_f32 v{20+j}, v{20+j}, v{40+j}")
    for j in range(4):
        k(f"v_cvt_pk_bf16_f32 v{16+j}, v{20+2*j}, v{21+2*j}")
    k("buffer_store_dwordx4 v[16:19], v3, s[20:23], 0 offen")
    k(f"{name}_done:")
    return k


def gemm_kernel(name, act_off, lda, wkeys, ldw, N, K_total, nsplit, epi, out_off=None, ldo=None):
    TM, TN, TK = 128, 256, 64
    dual = len(wkeys) == 2
    tn_eff = 128 if dual else 256
    nbn = N // tn_eff
    nbm = 2048 // TM
    kper = K_total // nsplit
    nkt = kper // TK
    grid = nbm * nbn * nsplit
    ACT, BUF = 16384, 49152
    k = K(name, grid, 512, 3 * BUF, 192)
    k(f"""
    s_cmp_ge_u32 s2, {grid}
    s_cbranch_scc1 {name}_done
    s_load_dwordx2 s[4:5], s[0:1], {KA[wkeys[0]]}
    s_load_dwordx2 s[6:7], s[0:1], {KA[wkeys[-1]]}
    s_load_dwordx2 s[8:9], s[0:1], {KA['ws']}
    """)
    k("s_and_b32 s40, s2, 15")
    k("s_lshr_b32 s41, s2, 4")
    if nsplit > 1 and nbn & (nbn - 1) == 0:
        k(f"s_and_b32 s42, s41, {nbn-1}")
        k(f"s_lshr_b32 s43, s41, {nbn.bit_length()-1}")
    elif nsplit == 1:
        k("s_mov_b32 s42, s41")
        k("s_mov_b32 s43, 0")
    else:
        raise NotImplementedError
    k("""
    v_and_b32 v1, 63, v0            ; lane
    v_lshrrev_b32 v2, 6, v0         ; wave
    s_nop 0
    v_readfirstlane_b32 s50, v2
    s_waitcnt lgkmcnt(0)
    """)
    srd(k, 12, 8, 2048 * lda * 2, act_off)
    srd(k, 16, 4, K_total * ldw * 2)
    srd(k, 20, 6, K_total * ldw * 2)
    k(f"""
    v_lshrrev_b32 v3, 3, v1
    v_lshlrev_b32 v4, 3, v2
    v_add_u32 v3, v3, v4            ; row (i=0)
    v_lshrrev_b32 v5, 1, v3
    v_and_b32 v5, 7, v5
    v_and_b32 v4, 7, v1
    v_xor_b32 v4, v4, v5            ; c
    s_lshl_b32 s44, s40, 7
    v_add_u32 v5, s44, v3
    s_mov_b32 s45, {lda*2}
    v_mul_lo_u32 v5, v5, s45
    v_lshlrev_b32 v6, 4, v4
    v_add_u32 v5, v5, v6
    s_mul_i32 s46, s43, {kper*2}
    v_add_u32 v10, s46, v5
    v_add_u32 v11, {64*lda*2}, v10
    s_lshl_b32 s51, s50, 10
    """)
    if not dual:
        k(f"""
        v_lshrrev_b32 v3, 5, v1
        v_lshlrev_b32 v4, 1, v2
        v_add_u32 v3, v3, v4
        v_and_b32 v5, 3, v3
        v_lshlrev_b32 v5, 2, v5
        v_and_b32 v4, 31, v1
        v_xor_b32 v4, v4, v5
        s_mul_i32 s46, s43, {kper}
        v_add_u32 v5, s46, v3
        s_mov_b32 s45, {ldw*2}
        v_mul_lo_u32 v5, v5, s45
        v_lshlrev_b32 v6, 4, v4
        v_add_u32 v5, v5, v6
        s_lshl_b32 s46, s42, 9
        v_add_u32 v13, s46, v5
        """)
        for i in range(1, 4):
            k(f"v_add_u32 v{13+i}, {16*i*ldw*2}, v13")
        wsrd = [16] * 4
        wlds = [8192 * i for i in range(4)]
        WROW = 512
    else:
        k(f"""
        v_lshrrev_b32 v3, 4, v1
        v_lshlrev_b32 v4, 2, v2
        v_add_u32 v3, v3, v4
        v_and_b32 v5, 3, v3
        v_lshlrev_b32 v5, 2, v5
        v_and_b32 v4, 15, v1
        v_xor_b32 v4, v4, v5
        s_mul_i32 s46, s43, {kper}
        v_add_u32 v5, s46, v3
        s_mov_b32 s45, {ldw*2}
        v_mul_lo_u32 v5, v5, s45
        v_lshlrev_b32 v6, 4, v4
        v_add_u32 v5, v5, v6
        s_lshl_b32 s46, s42, 8
        v_add_u32 v13, s46, v5
        v_add_u32 v14, {32*ldw*2}, v13
        v_mov_b32 v15, v13
        v_mov_b32 v16, v14
        """)
        wsrd = [16, 16, 20, 20]
        wlds = [0, 8192, 16384, 16384 + 8192]
        WROW = 256
    k("""
    v_and_b32 v3, 31, v1
    v_and_b32 v4, 1, v2
    v_lshlrev_b32 v4, 6, v4
    v_add_u32 v4, v4, v3            ; m
    v_lshrrev_b32 v5, 1, v4
    v_and_b32 v5, 7, v5
    v_lshrrev_b32 v6, 5, v1
    v_lshlrev_b32 v7, 7, v4
    """)
    for ks in range(4):
        k(f"v_add_u32 v8, {2*ks}, v6")
        k("v_xor_b32 v8, v8, v5")
        k("v_lshlrev_b32 v8, 4, v8")
        k(f"v_add_u32 v{20+ks}, v7, v8")
    k("""
    v_lshrrev_b32 v3, 4, v1         ; g
    v_and_b32 v4, 15, v1            ; i
    v_lshrrev_b32 v5, 1, v2         ; wn
    """)
    k("v_lshlrev_b32 v5, 3, v5" if not dual else "v_lshlrev_b32 v5, 2, v5")
    k(f"""
    v_and_b32 v6, 1, v3
    v_lshlrev_b32 v6, 1, v6
    v_add_u32 v5, v5, v6
    v_and_b32 v6, 3, v4
    v_lshrrev_b32 v6, 1, v6
    v_add_u32 v5, v5, v6
    v_lshrrev_b32 v6, 2, v4         ; i>>2
    v_lshrrev_b32 v7, 1, v3
    v_lshlrev_b32 v7, 3, v7
    v_add_u32 v7, v7, v6            ; k row
    v_lshlrev_b32 v7, {WROW.bit_length()-1}, v7
    v_and_b32 v8, 1, v4
    v_lshlrev_b32 v8, 3, v8
    v_add_u32 v7, v7, v8
    v_lshlrev_b32 v6, 2, v6
    """)
    for nb in range(2):
        if not dual:
            k(f"v_add_u32 v8, {nb*4}, v5")
            extra = 0
        else:
            k("v_mov_b32 v8, v5")
            extra = nb * 16384
        k("v_xor_b32 v8, v8, v6")
        k("v_lshlrev_b32 v8, 4, v8")
        k("v_add_u32 v8, v8, v7")
        k(f"v_add_u32 v{24+nb}, {ACT+extra}, v8")
    for st in range(1, 3):
        for r in range(6):
            k(f"v_add_u32 v{20+8*st+r}, {st*BUF}, v{20+r}")
    for r in range(64):
        k(f"v_mov_b32 v{64+r}, 0")
    def dma(kt):
        st = kt % 3
        k(f"s_mov_b32 s47, {kt*TK*2}")
        k(f"s_mov_b32 s48, {kt*TK*ldw*2}")
        for i in range(2):
            k(f"s_add_u32 m0, s51, {st*BUF + i*8192}")
            k("s_nop 0")
            k(f"buffer_load_dwordx4 v{10+i}, s[12:15], s47 offen lds")
        for i in range(4):
            k(f"s_add_u32 m0, s51, {st*BUF + ACT + wlds[i]}")
            k("s_nop 0")
            k(f"buffer_load_dwordx4 v{13+i}, s[{wsrd[i]}:{wsrd[i]+3}], s48 offen lds")
    def reads(st, ks, fb):
        base = 128 + fb * 16
        for mb in range(2):
            k(f"ds_read_b128 v[{base+mb*4}:{base+mb*4+3}], v{20+8*st+ks} offset:{mb*4096}")
        for nb in range(2):
            for s_ in range(2):
                r = base + 8 + nb * 4 + s_ * 2
                k(f"ds_read_b64_tr_b16 v[{r}:{r+1}], v{24+8*st+nb} offset:{(ks*16+s_*4)*WROW}")
    def compute(kt):
        st = kt % 3
        reads(st, 0, 0)
        reads(st, 1, 1)
        for ks in range(4):
            fb = ks % 3
            if ks + 2 < 4:
                reads(st, ks + 2, (ks + 2) % 3)
            k(f"s_waitcnt lgkmcnt({6*min(2, 3-ks)})")
            base = 128 + fb * 16
            for nb in range(2):
                for mb in range(2):
                    a = base + 8 + nb * 4
                    b = base + mb * 4
                    d = 64 + (nb * 2 + mb) * 16
                    k(f"v_mfma_f32_32x32x16_bf16 v[{d}:{d+15}], v[{a}:{a+3}], v[{b}:{b+3}], v[{d}:{d+15}]")
    dma(0)
    dma(1)
    for kt in range(nkt):
        k(f"s_waitcnt vmcnt({6 if kt+1 < nkt else 0})")
        k("s_barrier")
        if kt + 2 < nkt:
            dma(kt + 2)
        compute(kt)
    k("s_nop 7\ns_nop 7")
    k("""
    v_and_b32 v3, 31, v1
    v_and_b32 v4, 1, v2
    v_lshlrev_b32 v4, 6, v4
    v_add_u32 v4, v4, v3
    s_lshl_b32 s44, s40, 7
    v_add_u32 v4, s44, v4           ; m (mb=0)
    v_lshrrev_b32 v5, 5, v1
    v_lshlrev_b32 v5, 2, v5         ; 4h
    v_lshrrev_b32 v6, 1, v2         ; wn
    """)
    if epi == "bf16":
        srd(k, 24, 8, 2048 * ldo * 2, out_off)
        k(f"""
        v_lshlrev_b32 v6, 6, v6
        v_add_u32 v5, v5, v6
        s_lshl_b32 s46, s42, 8
        v_add_u32 v5, s46, v5           ; n
        s_mov_b32 s45, {ldo}
        v_mul_lo_u32 v4, v4, s45
        v_add_u32 v4, v4, v5
        v_lshlrev_b32 v4, 1, v4
        v_add_u32 v5, {32*ldo*2}, v4
        """)
        for nb in range(2):
            for mb in range(2):
                d = 64 + (nb * 2 + mb) * 16
                for g4 in range(4):
                    for j in range(4):
                        rbf(k, f"v{d+4*g4+j}")
                        k(f"v_mul_f32 v{d+4*g4+j}, 0x3e0293ee, v{d+4*g4+j}")
                    k(f"v_cvt_pk_bf16_f32 v8, v{d+4*g4}, v{d+4*g4+1}")
                    k(f"v_cvt_pk_bf16_f32 v9, v{d+4*g4+2}, v{d+4*g4+3}")
                    k(f"buffer_store_dwordx2 v[8:9], v{4+mb}, s[24:27], 0 offen offset:{(nb*32+8*g4)*2}")
                    k("s_nop 1")
    elif epi == "part":
        srd(k, 24, 8, nsplit * 2048 * 512 * 4, WS.part)
        k(f"""
        v_lshlrev_b32 v6, 6, v6
        v_add_u32 v5, v5, v6
        s_lshl_b32 s46, s42, 8
        v_add_u32 v5, s46, v5           ; n
        v_lshlrev_b32 v4, 9, v4
        v_add_u32 v4, v4, v5
        v_lshlrev_b32 v4, 2, v4
        s_mul_i32 s46, s43, {2048*512*4}
        v_add_u32 v4, s46, v4
        v_add_u32 v5, {32*512*4}, v4
        """)
        for nb in range(2):
            for mb in range(2):
                d = 64 + (nb * 2 + mb) * 16
                for g4 in range(4):
                    k(f"buffer_store_dwordx4 v[{d+4*g4}:{d+4*g4+3}], v{4+mb}, s[24:27], 0 offen offset:{(nb*32+8*g4)*4}")
    elif epi == "geglu":
        srd(k, 24, 8, 2048 * ldo * 2, out_off)
        k(f"""
        v_lshlrev_b32 v6, 5, v6
        v_add_u32 v5, v5, v6
        s_lshl_b32 s46, s42, 7
        v_add_u32 v5, s46, v5           ; n
        s_mov_b32 s45, {ldo}
        v_mul_lo_u32 v4, v4, s45
        v_add_u32 v4, v4, v5
        v_lshlrev_b32 v4, 1, v4
        v_add_u32 v5, {32*ldo*2}, v4
        s_mov_b32 s45, 0x3d372713       ; 0.044715
        s_mov_b32 s46, 0x40135761
        """)
        for mb in range(2):
            dg = 64 + (0 * 2 + mb) * 16
            du = 64 + (1 * 2 + mb) * 16
            for r in range(16):
                g, u = f"v{dg+r}", f"v{du+r}"
                rbf(k, g)
                rbf(k, u)
                k(f"v_mul_f32 v8, {g}, {g}")
                k(f"v_mul_f32 v8, v8, {g}")
                k(f"v_fma_f32 v8, v8, s45, {g}")
                k(f"v_mul_f32 v8, s46, v8")
                k("v_sub_f32 v8, 0, v8")
                k("v_exp_f32 v8, v8")
                k("s_nop 0")
                k("v_add_f32 v8, 1.0, v8")
                k("v_rcp_f32 v8, v8")
                k("s_nop 0")
                k(f"v_mul_f32 {g}, {g}, v8")
                rbf(k, g)
                k(f"v_mul_f32 {g}, {g}, {u}")
            for g4 in range(4):
                k(f"v_cvt_pk_bf16_f32 v8, v{dg+4*g4}, v{dg+4*g4+1}")
                k(f"v_cvt_pk_bf16_f32 v9, v{dg+4*g4+2}, v{dg+4*g4+3}")
                k(f"buffer_store_dwordx2 v[8:9], v{4+mb}, s[24:27], 0 offen offset:{(8*g4)*2}")
                k("s_nop 1")
    k(f"{name}_done:")
    return k


def final_kernel(nsplit):
    name = "final_kernel"
    k = K(name, 512, 256, 0, 96)
    k(f"""
    s_cmp_ge_u32 s2, 512
    s_cbranch_scc1 {name}_done
    s_load_dwordx2 s[4:5], s[0:1], {KA['out']}
    s_load_dwordx2 s[8:9], s[0:1], {KA['ws']}
    v_lshrrev_b32 v1, 6, v0
    v_and_b32 v2, 63, v0
    s_lshl_b32 s3, s2, 2
    v_add_u32 v1, s3, v1            ; row
    s_waitcnt lgkmcnt(0)
    """)
    srd(k, 12, 4, 2048 * 512 * 2)
    srd(k, 16, 8, 3072 * 4, WS.mod)
    srd(k, 24, 8, 2048 * 512 * 2, WS.x1)
    srd(k, 28, 8, nsplit * 2048 * 512 * 4, WS.part)
    k("""
    v_lshlrev_b32 v3, 10, v1
    v_lshlrev_b32 v4, 4, v2
    v_add_u32 v3, v3, v4
    v_lshlrev_b32 v5, 1, v3
    v_lshlrev_b32 v6, 5, v2
    buffer_load_dwordx4 v[16:19], v3, s[24:27], 0 offen
    """)
    k(f"s_mov_b32 s33, {5*2048}")
    k(f"buffer_load_dwordx4 v[48:51], v6, s[16:19], s33 offen")
    k(f"buffer_load_dwordx4 v[52:55], v6, s[16:19], s33 offen offset:16")
    for s in range(nsplit):
        k(f"s_mov_b32 s33, {s*2048*512*4}")
        k(f"buffer_load_dwordx4 v[{64+8*(s%2)}:{67+8*(s%2)}], v5, s[28:31], s33 offen")
        k(f"buffer_load_dwordx4 v[{68+8*(s%2)}:{71+8*(s%2)}], v5, s[28:31], s33 offen offset:16")
        k("s_waitcnt vmcnt(0)")
        for j in range(8):
            if s == 0:
                k(f"v_mov_b32 v{56+j}, v{64+j}")
            else:
                k(f"v_add_f32 v{56+j}, v{56+j}, v{64+8*(s%2)+j}")
    for j in range(4):
        k(f"v_lshlrev_b32 v{20+2*j}, 16, v{16+j}")
        k(f"v_and_b32 v{21+2*j}, 0xffff0000, v{16+j}")
    for j in range(8):
        rbf(k, f"v{56+j}")
        k(f"v_mul_f32 v{56+j}, v{48+j}, v{56+j}")
        rbf(k, f"v{56+j}")
        k(f"v_add_f32 v{20+j}, v{20+j}, v{56+j}")
    for j in range(4):
        k(f"v_cvt_pk_bf16_f32 v{16+j}, v{20+2*j}, v{21+2*j}")
    k("buffer_store_dwordx4 v[16:19], v3, s[12:15], 0 offen")
    k(f"{name}_done:")
    return k


def attn_kernel():
    name = "attn_kernel"
    k = K(name, 256, 512, 65536, 256)
    k(f"""
    s_cmp_ge_u32 s2, 256
    s_cbranch_scc1 {name}_done
    s_load_dwordx2 s[4:5], s[0:1], {KA['k']}
    s_load_dwordx2 s[6:7], s[0:1], {KA['v']}
    s_load_dwordx2 s[8:9], s[0:1], {KA['ws']}
    s_and_b32 s40, s2, 7
    s_lshr_b32 s41, s2, 3
    s_and_b32 s42, s41, 3
    s_lshr_b32 s43, s41, 2          ; q block (0..7)
    s_lshl_b32 s44, s40, 2
    s_add_u32 s44, s44, s42         ; q head
    s_waitcnt lgkmcnt(0)
    s_lshl_b32 s45, s40, 19
    s_add_u32 s4, s4, s45
    s_addc_u32 s5, s5, 0
    s_add_u32 s6, s6, s45
    s_addc_u32 s7, s7, 0
    """)
    srd(k, 12, 4, 2048 * 128 * 2)
    srd(k, 16, 6, 2048 * 128 * 2)
    srd(k, 20, 8, 2048 * 4096 * 2, WS.q)
    srd(k, 24, 8, 2048 * 4096 * 2, WS.o)
    k("""
    v_and_b32 v1, 63, v0
    v_lshrrev_b32 v2, 6, v0
    v_and_b32 v3, 31, v1
    v_lshrrev_b32 v4, 5, v1          ; h
    v_readfirstlane_b32 s50, v2
    v_lshlrev_b32 v5, 5, v2
    v_add_u32 v5, v5, v3
    s_lshl_b32 s45, s43, 8
    v_add_u32 v5, s45, v5
    v_lshlrev_b32 v5, 13, v5
    s_lshl_b32 s45, s44, 8
    v_add_u32 v5, s45, v5
    v_lshlrev_b32 v6, 4, v4
    v_add_u32 v6, v5, v6
    """)
    for ds in range(8):
        k(f"buffer_load_dwordx4 v[{32+4*ds}:{35+4*ds}], v6, s[20:23], 0 offen offset:{ds*32}")
    k("""
    v_lshrrev_b32 v7, 4, v0
    v_and_b32 v8, 15, v0
    v_lshlrev_b32 v9, 8, v7
    v_lshlrev_b32 v10, 4, v8
    v_add_u32 v10, v9, v10
    v_add_u32 v6, 0x2000, v10        ; i=1
    v_and_b32 v11, 15, v7
    v_xor_b32 v11, v11, v8
    v_lshlrev_b32 v11, 4, v11
    v_add_u32 v11, v9, v11
    v_and_b32 v12, 3, v7
    v_lshlrev_b32 v12, 2, v12
    v_xor_b32 v12, v12, v8
    v_lshlrev_b32 v12, 4, v12
    v_add_u32 v12, v9, v12
    v_add_u32 v12, 0x4000, v12
    v_and_b32 v13, 15, v1
    v_lshlrev_b32 v14, 8, v3
    """)
    for ds in range(8):
        k(f"v_add_u32 v15, {2*ds}, v4")
        k("v_xor_b32 v15, v15, v13")
        k("v_lshlrev_b32 v15, 4, v15")
        k(f"v_add_u32 v{16+ds}, v14, v15")
    k("""
    v_lshrrev_b32 v7, 4, v1          ; g
    v_and_b32 v8, 15, v1             ; i
    v_lshrrev_b32 v9, 2, v8          ; i>>2
    v_lshlrev_b32 v13, 2, v4
    v_add_u32 v13, v13, v9           ; key
    v_lshlrev_b32 v13, 8, v13
    v_and_b32 v14, 1, v8
    v_lshlrev_b32 v14, 3, v14
    v_add_u32 v13, v13, v14          ; + (i&1)*8
    v_add_u32 v13, 0x4000, v13
    v_and_b32 v14, 1, v7
    v_lshlrev_b32 v14, 1, v14
    v_and_b32 v15, 3, v8
    v_lshrrev_b32 v15, 1, v15
    v_add_u32 v14, v14, v15
    v_lshlrev_b32 v9, 2, v9
    """)
    for db in range(4):
        k(f"v_add_u32 v15, {4*db}, v14")
        k("v_xor_b32 v15, v15, v9")
        k("v_lshlrev_b32 v15, 4, v15")
        k(f"v_add_u32 v{24+db}, v13, v15")
    for r in range(64):
        k(f"v_mov_b32 v{64+r}, 0")
    k("v_mov_b32 v28, 0")
    k("v_mov_b32 v29, 0")
    for r in range(16):
        k(f"v_mov_b32 v{232+r}, 0")
    NFB = 10
    PD = 8
    def issue_loads(kk, vv):
        if kk:
            k("buffer_load_dwordx4 v[160:163], v10, s[12:15], s47 offen")
            k("buffer_load_dwordx4 v[164:167], v6, s[12:15], s47 offen")
        if vv:
            k("buffer_load_dwordx4 v[168:171], v10, s[16:19], s48 offen")
            k("buffer_load_dwordx4 v[172:175], v6, s[16:19], s48 offen")
    def write_lds(buf, kk=True, vv=True):
        o = buf * 32768
        if kk:
            k(f"ds_write_b128 v11, v[160:163] offset:{o}")
            k(f"ds_write_b128 v11, v[164:167] offset:{o+8192}")
        if vv:
            k(f"ds_write_b128 v12, v[168:171] offset:{o}")
            k(f"ds_write_b128 v12, v[172:175] offset:{o+8192}")
    def mphase(par, do_pv, do_qk, stage):
        o = par * 32768
        slots = []
        if do_pv:
            for t in range(4):
                for db in range(4):
                    slots.append(("pv", t, db))
        if do_qk:
            for kb in range(2):
                for ds in range(8):
                    slots.append(("qk", kb, ds))
        nops = []
        def load(i):
            kind, a, b = slots[i]
            f = 192 + (i % NFB) * 4
            if kind == "pv":
                for s in range(2):
                    k(f"ds_read_b64_tr_b16 v[{f+2*s}:{f+2*s+1}], v{24+b} offset:{o + (16*a+8*s)*256}")
                nops.append(2)
            else:
                k(f"ds_read_b128 v[{f}:{f+3}], v{16+b} offset:{o + a*8192}")
                nops.append(1)
        n = len(slots)
        k("s_setprio 1")
        for i in range(min(PD, n)):
            load(i)
        for i in range(n):
            if i + PD < n:
                load(i + PD)
            out_after = sum(nops[i+1:])
            k(f"s_waitcnt lgkmcnt({min(15,out_after)})")
            kind, a, b = slots[i]
            f = 192 + (i % NFB) * 4
            if kind == "pv":
                d = 64 + b * 16
                k(f"v_mfma_f32_32x32x16_bf16 v[{d}:{d+15}], v[{f}:{f+3}], v[{176+4*a}:{179+4*a}], v[{d}:{d+15}]")
            else:
                d = 128 + a * 16
                c = "v[232:247]" if b == 0 else f"v[{d}:{d+15}]"
                k(f"v_mfma_f32_32x32x16_bf16 v[{d}:{d+15}], v[{f}:{f+3}], v[{32+4*b}:{35+4*b}], {c}")
        k("s_setprio 0")
        if stage:
            k("s_waitcnt vmcnt(0)")
            write_lds(1 - par)
            k("s_waitcnt lgkmcnt(0)")
    cnt = [0]
    def vphase(first=False):
        cnt[0] += 1
        lab = f"{name}_nr{cnt[0]}"
        k("s_add_u32 s47, s47, 16384")
        k("s_add_u32 s48, s48, 16384")
        issue_loads(True, True)
        k("s_nop 7")
        k("v_max3_f32 v30, v128, v129, v130")
        k("v_max3_f32 v31, v131, v132, v133")
        for r in range(134, 160, 4):
            k(f"v_max3_f32 v30, v30, v{r}, v{r+1}")
            if r + 3 < 160:
                k(f"v_max3_f32 v31, v31, v{r+2}, v{r+3}")
        k("v_max_f32 v30, v30, v31")
        k("v_mov_b32 v31, v30")
        k("s_nop 1")
        k("v_permlane32_swap_b32 v30, v31")
        k("v_max_f32 v30, v30, v31")
        if not first:
            k("v_cmp_lt_f32 vcc, 0, v30")
            k("s_cbranch_vccz " + lab)
            k("v_max_f32 v30, 0, v30")
        k("v_sub_f32 v31, 0, v30")
        k("v_exp_f32 v31, v31")
        k("v_add_f32 v28, v28, v30")
        k("v_sub_f32 v30, 0, v30")
        k("v_mul_f32 v29, v29, v31")
        for r in range(32):
            k(f"v_add_f32 v{128+r}, v{128+r}, v30")
        if not first:
            for r in range(64):
                k(f"v_mul_f32 v{64+r}, v{64+r}, v31")
        for r in range(16):
            k(f"v_sub_f32 v{232+r}, 0, v28")
        k(lab + ":")
        for r in range(32):
            k(f"v_exp_f32 v{128+r}, v{128+r}")
            if r >= 2 and r % 2 == 1:
                q = r - 3
                k(f"v_add_f32 v29, v29, v{128+q}")
                k(f"v_add_f32 v29, v29, v{129+q}")
                k(f"v_cvt_pk_bf16_f32 v{176+q//2}, v{128+q}, v{129+q}")
        k("v_add_f32 v29, v29, v158")
        k("v_add_f32 v29, v29, v159")
        k("v_cvt_pk_bf16_f32 v191, v158, v159")
    k("s_mov_b32 s47, 0")
    k("s_mov_b32 s48, 0")
    issue_loads(True, False)
    k("s_waitcnt vmcnt(0)")
    write_lds(0, True, False)
    k("s_mov_b32 s47, 16384")
    issue_loads(True, True)
    k("s_waitcnt lgkmcnt(0)")
    k("s_barrier")
    k(f"""
    s_cmp_lt_u32 s50, 4
    s_cbranch_scc1 {name}_nostag
    s_barrier
    {name}_nostag:
    """)
    mphase(0, False, True, True)
    k("s_barrier")
    vphase(True)
    k("s_barrier")
    mphase(1, True, True, True)
    k("s_barrier")
    vphase()
    k("s_barrier")
    k("s_mov_b32 s49, 2")
    k(f"{name}_loop:")
    for par in range(2):
        if STAMP: k(f"s_memtime s[{60+8*par}:{61+8*par}]")
        mphase(par, True, True, True)
        if STAMP: k(f"s_memtime s[{62+8*par}:{63+8*par}]")
        k("s_barrier")
        if STAMP: k(f"s_memtime s[{64+8*par}:{65+8*par}]")
        vphase()
        if STAMP: k(f"s_memtime s[{66+8*par}:{67+8*par}]")
        k("s_barrier")
    if STAMP:
        k("s_cmp_eq_u32 s49, 10")
        k(f"s_cbranch_scc0 {name}_nost")
        k("s_waitcnt lgkmcnt(0)")
        for i in range(8):
            k(f"s_mov_b32 s{80+i}, s{60+2*i}")
        k(f"{name}_nost:")
    k(f"""
    s_add_u32 s49, s49, 2
    s_cmp_lt_u32 s49, 32
    s_cbranch_scc1 {name}_loop
    """)
    mphase(0, True, False, False)
    k(f"""
    s_cmp_ge_u32 s50, 4
    s_cbranch_scc1 {name}_nostag2
    s_barrier
    {name}_nostag2:
    s_nop 7
    s_nop 7
    v_mov_b32 v31, v29
    s_nop 1
    v_permlane32_swap_b32 v29, v31
    v_add_f32 v29, v29, v31
    v_rcp_f32 v29, v29
    v_lshlrev_b32 v6, 3, v4
    v_add_u32 v6, v5, v6
    """)
    for db in range(4):
        for g4 in range(4):
            d = 64 + db * 16 + g4 * 4
            for j in range(4):
                k(f"v_mul_f32 v{d+j}, v{d+j}, v29")
            k(f"v_cvt_pk_bf16_f32 v8, v{d}, v{d+1}")
            k(f"v_cvt_pk_bf16_f32 v9, v{d+2}, v{d+3}")
            k(f"buffer_store_dwordx2 v[8:9], v6, s[24:27], 0 offen offset:{(db*32+g4*8)*2}")
            k("s_nop 1")
    if STAMP:
        k(f"s_load_dwordx2 s[4:5], s[0:1], {KA['dbg']}")
        k("s_waitcnt lgkmcnt(0)")
        srd(k, 12, 4, 256)
        k("s_cmp_lg_u32 s2, 0")
        k(f"s_cbranch_scc1 {name}_done")
        k("v_lshlrev_b32 v1, 5, v2")
        for i in range(8):
            k(f"v_mov_b32 v3, s{80+i}")
            k(f"buffer_store_dword v3, v1, s[12:15], 0 offen offset:{4*i}")
    k(f"{name}_done:")
    return k


def main():
    ks = [
        mod_kernel(),
        ln_kernel("ln1_kernel", 0, 0, 1, None, WS.h2, None),
        gemm_kernel("qproj_kernel", WS.h2, 512, ["wq"], 4096, 4096, 512, 1, "bf16", WS.q, 4096),
        attn_kernel(),
        gemm_kernel("wo_kernel", WS.o, 4096, ["wo"], 512, 512, 4096, 8, "part"),
        ln_kernel("ln2_kernel", 8, 3, 4, 2, WS.h2, WS.x1),
        gemm_kernel("gateup_kernel", WS.h2, 512, ["wg", "wu"], 1792, 1792, 512, 1, "geglu", WS.hh, 1792),
        gemm_kernel("down_kernel", WS.hh, 1792, ["wd"], 512, 512, 1792, 7, "part"),
        final_kernel(7),
    ]
    hdr = open("cdna_kernels/" + NAME + ".s.ref").read().split("\n")
    top = [l for l in hdr if l.startswith(";") and "@launch" not in l]
    s = "\n".join(top) + "\n"
    s += "\n".join(k.launch() for k in ks) + "\n"
    s += '.amdgcn_target "amdgcn-amd-amdhsa--gfx950"\n.text\n'
    for k in ks:
        s += k.text()
    s += '.section .rodata,"a"\n'
    for k in ks:
        s += k.desc()
    open(OUT, "w").write(s)
    print("wrote", OUT, len(s))


if __name__ == "__main__":
    main()
```

```python
import sys, os
sys.path.insert(0, os.path.dirname(__file__))
from layout import WS

STAMP = int(os.environ.get("STAMP", "0"))
NAME = "adaLN_cond__gqa_block_cached__glu_gated_geglu__prompt"
OUT = "cdna_kernels/" + NAME + ".s"

KA = dict(x=0, k=8, v=16, wq=24, wo=32, bx=40, wg=48, wu=56, wd=64, c=72, wmod=80, out=88, dbg=96, ws=104)


class K:
    def __init__(self, name, grid, block, lds, vgpr, sgpr=100):
        self.name, self.grid, self.block, self.lds, self.vgpr, self.sgpr = name, grid, block, lds, vgpr, sgpr
        self.L = []
    def __call__(self, s):
        for line in s.strip("\n").split("\n"):
            line = line.strip()
            if not line:
                continue
            if line.endswith(":"):
                self.L.append(line)
            else:
                self.L.append("    " + line)
    def text(self):
        t = f".globl {self.name}\n.p2align 8\n.type {self.name},@function\n{self.name}:\n"
        t += "\n".join(self.L) + "\n    s_endpgm\n"
        return t
    def desc(self):
        acc = (self.vgpr + 3) // 4 * 4
        return f""".p2align 6
.amdhsa_kernel {self.name}
  .amdhsa_next_free_vgpr {self.vgpr}
  .amdhsa_next_free_sgpr {self.sgpr}
  .amdhsa_accum_offset {acc}
  .amdhsa_group_segment_fixed_size 0
  .amdhsa_kernarg_size 112
  .amdhsa_user_sgpr_count 2
  .amdhsa_user_sgpr_kernarg_segment_ptr 1
  .amdhsa_system_sgpr_workgroup_id_x 1
.end_amdhsa_kernel
"""
    def launch(self):
        return f"; @launch kernel={self.name} grid=({self.grid},1,1) block=({self.block},1,1) lds={self.lds}"


def srd(k, d, base, nbytes, off=0):
    if off:
        k(f"s_add_u32 s{d}, s{base}, {off}")
        k(f"s_addc_u32 s{d+1}, s{base+1}, 0")
    else:
        k(f"s_mov_b32 s{d}, s{base}")
        k(f"s_mov_b32 s{d+1}, s{base+1}")
    k(f"s_mov_b32 s{d+2}, {nbytes}")
    k(f"s_mov_b32 s{d+3}, 0x00020000")


def rbf(k, v, tmp=None):
    k(f"v_cvt_pk_bf16_f32 {v}, {v}, {v}")
    k(f"v_lshlrev_b32 {v}, 16, {v}")


def mod_kernel():
    k = K("mod_kernel", 24, 1024, 8192, 72)
    k(f"""
    s_cmp_ge_u32 s2, 24
    s_cbranch_scc1 mod_done
    s_load_dwordx2 s[4:5], s[0:1], {KA['c']}
    s_load_dwordx2 s[6:7], s[0:1], {KA['wmod']}
    s_load_dwordx2 s[8:9], s[0:1], {KA['ws']}
    v_lshrrev_b32 v1, 6, v0
    v_and_b32 v2, 63, v0
    s_nop 0
    v_readfirstlane_b32 s10, v1
    s_waitcnt lgkmcnt(0)
    s_lshl_b32 s11, s10, 6
    s_add_u32 s4, s4, s11
    s_addc_u32 s5, s5, 0
    s_load_dwordx16 s[16:31], s[4:5], 0
    """)
    srd(k, 12, 6, 512 * 3072 * 2)
    srd(k, 36, 8, 3072 * 4, WS.mod)
    k(f"""
    s_mul_i32 s11, s10, {32*3072*2}
    s_lshl_b32 s33, s2, 8
    s_add_u32 s11, s11, s33
    v_lshlrev_b32 v3, 2, v2
    v_add_u32 v3, s11, v3
    """)
    for r in range(32):
        k(f"s_mov_b32 s33, {r*6144}")
        k(f"buffer_load_dword v{32+r}, v3, s[12:15], s33 offen")
    k("s_waitcnt lgkmcnt(0)")
    k("v_mov_b32 v4, 0\nv_mov_b32 v5, 0")
    for r in range(32):
        s = 16 + r // 2
        if r % 2 == 0:
            k(f"v_lshlrev_b32 v6, 16, s{s}")
        else:
            k(f"s_and_b32 s33, s{s}, 0xffff0000")
            k("v_mov_b32 v6, s33")
        k("""
        v_mul_f32 v7, 0xbfb8aa3b, v6
        v_exp_f32 v7, v7
        s_nop 0
        v_add_f32 v7, 1.0, v7
        v_rcp_f32 v7, v7
        s_nop 0
        v_mul_f32 v6, v6, v7
        """)
        rbf(k, "v6")
        k(f"s_waitcnt vmcnt({31-r})")
        k(f"v_lshlrev_b32 v8, 16, v{32+r}")
        k(f"v_and_b32 v9, 0xffff0000, v{32+r}")
        k("v_fmac_f32 v4, v6, v8")
        k("v_fmac_f32 v5, v6, v9")
    k("""
    v_lshlrev_b32 v10, 9, v1
    v_lshlrev_b32 v11, 3, v2
    v_add_u32 v10, v10, v11
    ds_write_b64 v10, v[4:5]
    s_waitcnt lgkmcnt(0)
    s_barrier
    v_cmp_gt_u32 vcc, 128, v0
    s_and_saveexec_b64 s[34:35], vcc
    s_cbranch_execz mod_done
    v_lshlrev_b32 v10, 2, v0
    """)
    for w in range(16):
        k(f"ds_read_b32 v{32+w}, v10 offset:{w*512}")
    k("s_waitcnt lgkmcnt(0)")
    k("v_mov_b32 v4, v32")
    for w in range(1, 16):
        k(f"v_add_f32 v4, v4, v{32+w}")
    rbf(k, "v4")
    k("""
    s_lshl_b32 s33, s2, 9
    v_add_u32 v10, s33, v10
    buffer_store_dword v4, v10, s[36:39], 0 offen
    mod_done:
    """)
    return k


def wave_sum(k, v, tmp, addr_regs):
    for a in addr_regs:
        k(f"ds_bpermute_b32 {tmp}, {a}, {v}")
        k("s_waitcnt lgkmcnt(0)")
        k(f"v_add_f32 {v}, {v}, {tmp}")


def ln_kernel(name, nsplit, sidx, cidx, gidx, dst_h, dst_x1):
    k = K(name, 512, 256, 0, 128)
    k(f"""
    s_cmp_ge_u32 s2, 512
    s_cbranch_scc1 {name}_done
    s_load_dwordx2 s[4:5], s[0:1], {KA['x']}
    s_load_dwordx2 s[8:9], s[0:1], {KA['ws']}
    v_lshrrev_b32 v1, 6, v0
    v_and_b32 v2, 63, v0
    s_lshl_b32 s3, s2, 2
    v_add_u32 v1, s3, v1            ; row
    s_waitcnt lgkmcnt(0)
    """)
    srd(k, 12, 4, 2048 * 512 * 2)
    srd(k, 16, 8, 3072 * 4, WS.mod)
    srd(k, 20, 8, 2048 * 512 * 2, dst_h)
    if nsplit:
        srd(k, 24, 8, 2048 * 512 * 2, dst_x1)
        srd(k, 28, 8, nsplit * 2048 * 512 * 4, WS.part)
    for i, m in enumerate([1, 2, 4, 8, 16, 32]):
        k(f"v_xor_b32 v{10+i}, {m}, v2")
        k(f"v_lshlrev_b32 v{10+i}, 2, v{10+i}")
    k("""
    v_lshlrev_b32 v3, 10, v1        ; row*1024 bytes (bf16 row)
    v_lshlrev_b32 v4, 4, v2
    v_add_u32 v3, v3, v4            ; + lane*16
    v_lshlrev_b32 v5, 1, v3
    v_lshlrev_b32 v6, 5, v2
    buffer_load_dwordx4 v[16:19], v3, s[12:15], 0 offen
    """)
    k(f"s_mov_b32 s33, {cidx*2048}")
    k(f"buffer_load_dwordx4 v[32:35], v6, s[16:19], s33 offen")
    k(f"buffer_load_dwordx4 v[36:39], v6, s[16:19], s33 offen offset:16")
    k(f"s_mov_b32 s33, {sidx*2048}")
    k(f"buffer_load_dwordx4 v[40:43], v6, s[16:19], s33 offen")
    k(f"buffer_load_dwordx4 v[44:47], v6, s[16:19], s33 offen offset:16")
    if nsplit:
        k(f"s_mov_b32 s33, {gidx*2048}")
        k(f"buffer_load_dwordx4 v[48:51], v6, s[16:19], s33 offen")
        k(f"buffer_load_dwordx4 v[52:55], v6, s[16:19], s33 offen offset:16")
        for s in range(nsplit):
            k(f"s_mov_b32 s33, {s*2048*512*4}")
            k(f"buffer_load_dwordx4 v[{64+8*s}:{67+8*s}], v5, s[28:31], s33 offen")
            k(f"buffer_load_dwordx4 v[{68+8*s}:{71+8*s}], v5, s[28:31], s33 offen offset:16")
        for s in range(nsplit):
            k(f"s_waitcnt vmcnt({2*(nsplit-1-s)})")
            for j in range(8):
                if s == 0:
                    k(f"v_mov_b32 v{56+j}, v{64+j}")
                else:
                    k(f"v_add_f32 v{56+j}, v{56+j}, v{64+8*s+j}")
    k("s_waitcnt vmcnt(0)")
    for j in range(4):
        k(f"v_lshlrev_b32 v{20+2*j}, 16, v{16+j}")
        k(f"v_and_b32 v{21+2*j}, 0xffff0000, v{16+j}")
    if nsplit:
        for j in range(8):
            rbf(k, f"v{56+j}")
            k(f"v_mul_f32 v{56+j}, v{48+j}, v{56+j}")
            rbf(k, f"v{56+j}")
            k(f"v_add_f32 v{20+j}, v{20+j}, v{56+j}")
        for j in range(4):
            k(f"v_cvt_pk_bf16_f32 v{16+j}, v{20+2*j}, v{21+2*j}")
        k("buffer_store_dwordx4 v[16:19], v3, s[24:27], 0 offen")
        for j in range(4):
            k(f"v_lshlrev_b32 v{20+2*j}, 16, v{16+j}")
            k(f"v_and_b32 v{21+2*j}, 0xffff0000, v{16+j}")
    k("v_add_f32 v7, v20, v21")
    for j in range(2, 8):
        k(f"v_add_f32 v7, v7, v{20+j}")
    wave_sum(k, "v7", "v8", [f"v{10+i}" for i in range(6)])
    k("v_mul_f32 v7, 0x3b000000, v7")
    k("v_mov_b32 v9, 0")
    for j in range(8):
        k(f"v_sub_f32 v8, v{20+j}, v7")
        k("v_fmac_f32 v9, v8, v8")
    wave_sum(k, "v9", "v8", [f"v{10+i}" for i in range(6)])
    k("v_mul_f32 v9, 0x3b000000, v9")
    rbf(k, "v7")
    rbf(k, "v9")
    k("v_add_f32 v9, 0x3727c5ac, v9")
    rbf(k, "v9")
    k("v_sqrt_f32 v9, v9")
    k("s_nop 0")
    rbf(k, "v9")
    k("v_rcp_f32 v8, v9")
    k("s_nop 0")
    for j in range(8):
        k(f"v_sub_f32 v{20+j}, v{20+j}, v7")
        rbf(k, f"v{20+j}")
        k(f"v_mul_f32 v28, v{20+j}, v8")
        k(f"v_fma_f32 v29, -v28, v9, v{20+j}")
        k(f"v_fma_f32 v{20+j}, v29, v8, v28")
        rbf(k, f"v{20+j}")
        k(f"v_add_f32 v{32+j}, 1.0, v{32+j}")
        rbf(k, f"v{32+j}")
        k(f"v_mul_f32 v{20+j}, v{20+j}, v{32+j}")
        rbf(k, f"v{20+j}")
        k(f"v_add_f32 v{20+j}, v{20+j}, v{40+j}")
    for j in range(4):
        k(f"v_cvt_pk_bf16_f32 v{16+j}, v{20+2*j}, v{21+2*j}")
    k("buffer_store_dwordx4 v[16:19], v3, s[20:23], 0 offen")
    k(f"{name}_done:")
    return k


def gemm_kernel(name, act_off, lda, wkeys, ldw, N, K_total, nsplit, epi, out_off=None, ldo=None):
    TM, TN, TK = 128, 256, 64
    dual = len(wkeys) == 2
    tn_eff = 128 if dual else 256
    nbn = N // tn_eff
    nbm = 2048 // TM
    kper = K_total // nsplit
    nkt = kper // TK
    grid = nbm * nbn * nsplit
    ACT, BUF = 16384, 49152
    k = K(name, grid, 512, 3 * BUF, 192)
    k(f"""
    s_cmp_ge_u32 s2, {grid}
    s_cbranch_scc1 {name}_done
    s_load_dwordx2 s[4:5], s[0:1], {KA[wkeys[0]]}
    s_load_dwordx2 s[6:7], s[0:1], {KA[wkeys[-1]]}
    s_load_dwordx2 s[8:9], s[0:1], {KA['ws']}
    """)
    k("s_and_b32 s40, s2, 15")
    k("s_lshr_b32 s41, s2, 4")
    if nsplit > 1 and nbn & (nbn - 1) == 0:
        k(f"s_and_b32 s42, s41, {nbn-1}")
        k(f"s_lshr_b32 s43, s41, {nbn.bit_length()-1}")
    elif nsplit == 1:
        k("s_mov_b32 s42, s41")
        k("s_mov_b32 s43, 0")
    else:
        raise NotImplementedError
    k("""
    v_and_b32 v1, 63, v0            ; lane
    v_lshrrev_b32 v2, 6, v0         ; wave
    s_nop 0
    v_readfirstlane_b32 s50, v2
    s_waitcnt lgkmcnt(0)
    """)
    srd(k, 12, 8, 2048 * lda * 2, act_off)
    srd(k, 16, 4, K_total * ldw * 2)
    srd(k, 20, 6, K_total * ldw * 2)
    k(f"""
    v_lshrrev_b32 v3, 3, v1
    v_lshlrev_b32 v4, 3, v2
    v_add_u32 v3, v3, v4            ; row (i=0)
    v_lshrrev_b32 v5, 1, v3
    v_and_b32 v5, 7, v5
    v_and_b32 v4, 7, v1
    v_xor_b32 v4, v4, v5            ; c
    s_lshl_b32 s44, s40, 7
    v_add_u32 v5, s44, v3
    s_mov_b32 s45, {lda*2}
    v_mul_lo_u32 v5, v5, s45
    v_lshlrev_b32 v6, 4, v4
    v_add_u32 v5, v5, v6
    s_mul_i32 s46, s43, {kper*2}
    v_add_u32 v10, s46, v5
    v_add_u32 v11, {64*lda*2}, v10
    s_lshl_b32 s51, s50, 10
    """)
    if not dual:
        k(f"""
        v_lshrrev_b32 v3, 5, v1
        v_lshlrev_b32 v4, 1, v2
        v_add_u32 v3, v3, v4
        v_and_b32 v5, 3, v3
        v_lshlrev_b32 v5, 2, v5
        v_and_b32 v4, 31, v1
        v_xor_b32 v4, v4, v5
        s_mul_i32 s46, s43, {kper}
        v_add_u32 v5, s46, v3
        s_mov_b32 s45, {ldw*2}
        v_mul_lo_u32 v5, v5, s45
        v_lshlrev_b32 v6, 4, v4
        v_add_u32 v5, v5, v6
        s_lshl_b32 s46, s42, 9
        v_add_u32 v13, s46, v5
        """)
        for i in range(1, 4):
            k(f"v_add_u32 v{13+i}, {16*i*ldw*2}, v13")
        wsrd = [16] * 4
        wlds = [8192 * i for i in range(4)]
        WROW = 512
    else:
        k(f"""
        v_lshrrev_b32 v3, 4, v1
        v_lshlrev_b32 v4, 2, v2
        v_add_u32 v3, v3, v4
        v_and_b32 v5, 3, v3
        v_lshlrev_b32 v5, 2, v5
        v_and_b32 v4, 15, v1
        v_xor_b32 v4, v4, v5
        s_mul_i32 s46, s43, {kper}
        v_add_u32 v5, s46, v3
        s_mov_b32 s45, {ldw*2}
        v_mul_lo_u32 v5, v5, s45
        v_lshlrev_b32 v6, 4, v4
        v_add_u32 v5, v5, v6
        s_lshl_b32 s46, s42, 8
        v_add_u32 v13, s46, v5
        v_add_u32 v14, {32*ldw*2}, v13
        v_mov_b32 v15, v13
        v_mov_b32 v16, v14
        """)
        wsrd = [16, 16, 20, 20]
        wlds = [0, 8192, 16384, 16384 + 8192]
        WROW = 256
    k("""
    v_and_b32 v3, 31, v1
    v_and_b32 v4, 1, v2
    v_lshlrev_b32 v4, 6, v4
    v_add_u32 v4, v4, v3            ; m
    v_lshrrev_b32 v5, 1, v4
    v_and_b32 v5, 7, v5
    v_lshrrev_b32 v6, 5, v1
    v_lshlrev_b32 v7, 7, v4
    """)
    for ks in range(4):
        k(f"v_add_u32 v8, {2*ks}, v6")
        k("v_xor_b32 v8, v8, v5")
        k("v_lshlrev_b32 v8, 4, v8")
        k(f"v_add_u32 v{20+ks}, v7, v8")
    k("""
    v_lshrrev_b32 v3, 4, v1         ; g
    v_and_b32 v4, 15, v1            ; i
    v_lshrrev_b32 v5, 1, v2         ; wn
    """)
    k("v_lshlrev_b32 v5, 3, v5" if not dual else "v_lshlrev_b32 v5, 2, v5")
    k(f"""
    v_and_b32 v6, 1, v3
    v_lshlrev_b32 v6, 1, v6
    v_add_u32 v5, v5, v6
    v_and_b32 v6, 3, v4
    v_lshrrev_b32 v6, 1, v6
    v_add_u32 v5, v5, v6
    v_lshrrev_b32 v6, 2, v4         ; i>>2
    v_lshrrev_b32 v7, 1, v3
    v_lshlrev_b32 v7, 3, v7
    v_add_u32 v7, v7, v6            ; k row
    v_lshlrev_b32 v7, {WROW.bit_length()-1}, v7
    v_and_b32 v8, 1, v4
    v_lshlrev_b32 v8, 3, v8
    v_add_u32 v7, v7, v8
    v_lshlrev_b32 v6, 2, v6
    """)
    for nb in range(2):
        if not dual:
            k(f"v_add_u32 v8, {nb*4}, v5")
            extra = 0
        else:
            k("v_mov_b32 v8, v5")
            extra = nb * 16384
        k("v_xor_b32 v8, v8, v6")
        k("v_lshlrev_b32 v8, 4, v8")
        k("v_add_u32 v8, v8, v7")
        k(f"v_add_u32 v{24+nb}, {ACT+extra}, v8")
    for st in range(1, 3):
        for r in range(6):
            k(f"v_add_u32 v{20+8*st+r}, {st*BUF}, v{20+r}")
    for r in range(64):
        k(f"v_mov_b32 v{64+r}, 0")
    def dma(kt):
        st = kt % 3
        k(f"s_mov_b32 s47, {kt*TK*2}")
        k(f"s_mov_b32 s48, {kt*TK*ldw*2}")
        for i in range(2):
            k(f"s_add_u32 m0, s51, {st*BUF + i*8192}")
            k("s_nop 0")
            k(f"buffer_load_dwordx4 v{10+i}, s[12:15], s47 offen lds")
        for i in range(4):
            k(f"s_add_u32 m0, s51, {st*BUF + ACT + wlds[i]}")
            k("s_nop 0")
            k(f"buffer_load_dwordx4 v{13+i}, s[{wsrd[i]}:{wsrd[i]+3}], s48 offen lds")
    def reads(st, ks, fb):
        base = 128 + fb * 16
        for mb in range(2):
            k(f"ds_read_b128 v[{base+mb*4}:{base+mb*4+3}], v{20+8*st+ks} offset:{mb*4096}")
        for nb in range(2):
            for s_ in range(2):
                r = base + 8 + nb * 4 + s_ * 2
                k(f"ds_read_b64_tr_b16 v[{r}:{r+1}], v{24+8*st+nb} offset:{(ks*16+s_*4)*WROW}")
    def compute(kt):
        st = kt % 3
        reads(st, 0, 0)
        reads(st, 1, 1)
        for ks in range(4):
            fb = ks % 3
            if ks + 2 < 4:
                reads(st, ks + 2, (ks + 2) % 3)
            k(f"s_waitcnt lgkmcnt({6*min(2, 3-ks)})")
            base = 128 + fb * 16
            for nb in range(2):
                for mb in range(2):
                    a = base + 8 + nb * 4
                    b = base + mb * 4
                    d = 64 + (nb * 2 + mb) * 16
                    k(f"v_mfma_f32_32x32x16_bf16 v[{d}:{d+15}], v[{a}:{a+3}], v[{b}:{b+3}], v[{d}:{d+15}]")
    dma(0)
    dma(1)
    for kt in range(nkt):
        k(f"s_waitcnt vmcnt({6 if kt+1 < nkt else 0})")
        k("s_barrier")
        if kt + 2 < nkt:
            dma(kt + 2)
        compute(kt)
    k("s_nop 7\ns_nop 7")
    k("""
    v_and_b32 v3, 31, v1
    v_and_b32 v4, 1, v2
    v_lshlrev_b32 v4, 6, v4
    v_add_u32 v4, v4, v3
    s_lshl_b32 s44, s40, 7
    v_add_u32 v4, s44, v4           ; m (mb=0)
    v_lshrrev_b32 v5, 5, v1
    v_lshlrev_b32 v5, 2, v5         ; 4h
    v_lshrrev_b32 v6, 1, v2         ; wn
    """)
    if epi == "bf16":
        srd(k, 24, 8, 2048 * ldo * 2, out_off)
        k(f"""
        v_lshlrev_b32 v6, 6, v6
        v_add_u32 v5, v5, v6
        s_lshl_b32 s46, s42, 8
        v_add_u32 v5, s46, v5           ; n
        s_mov_b32 s45, {ldo}
        v_mul_lo_u32 v4, v4, s45
        v_add_u32 v4, v4, v5
        v_lshlrev_b32 v4, 1, v4
        v_add_u32 v5, {32*ldo*2}, v4
        """)
        for nb in range(2):
            for mb in range(2):
                d = 64 + (nb * 2 + mb) * 16
                for g4 in range(4):
                    for j in range(4):
                        rbf(k, f"v{d+4*g4+j}")
                        k(f"v_mul_f32 v{d+4*g4+j}, 0x3e0293ee, v{d+4*g4+j}")
                    k(f"v_cvt_pk_bf16_f32 v8, v{d+4*g4}, v{d+4*g4+1}")
                    k(f"v_cvt_pk_bf16_f32 v9, v{d+4*g4+2}, v{d+4*g4+3}")
                    k(f"buffer_store_dwordx2 v[8:9], v{4+mb}, s[24:27], 0 offen offset:{(nb*32+8*g4)*2}")
                    k("s_nop 1")
    elif epi == "part":
        srd(k, 24, 8, nsplit * 2048 * 512 * 4, WS.part)
        k(f"""
        v_lshlrev_b32 v6, 6, v6
        v_add_u32 v5, v5, v6
        s_lshl_b32 s46, s42, 8
        v_add_u32 v5, s46, v5           ; n
        v_lshlrev_b32 v4, 9, v4
        v_add_u32 v4, v4, v5
        v_lshlrev_b32 v4, 2, v4
        s_mul_i32 s46, s43, {2048*512*4}
        v_add_u32 v4, s46, v4
        v_add_u32 v5, {32*512*4}, v4
        """)
        for nb in range(2):
            for mb in range(2):
                d = 64 + (nb * 2 + mb) * 16
                for g4 in range(4):
                    k(f"buffer_store_dwordx4 v[{d+4*g4}:{d+4*g4+3}], v{4+mb}, s[24:27], 0 offen offset:{(nb*32+8*g4)*4}")
    elif epi == "geglu":
        srd(k, 24, 8, 2048 * ldo * 2, out_off)
        k(f"""
        v_lshlrev_b32 v6, 5, v6
        v_add_u32 v5, v5, v6
        s_lshl_b32 s46, s42, 7
        v_add_u32 v5, s46, v5           ; n
        s_mov_b32 s45, {ldo}
        v_mul_lo_u32 v4, v4, s45
        v_add_u32 v4, v4, v5
        v_lshlrev_b32 v4, 1, v4
        v_add_u32 v5, {32*ldo*2}, v4
        s_mov_b32 s45, 0x3d372713       ; 0.044715
        s_mov_b32 s46, 0x40135761
        """)
        for mb in range(2):
            dg = 64 + (0 * 2 + mb) * 16
            du = 64 + (1 * 2 + mb) * 16
            for r in range(16):
                g, u = f"v{dg+r}", f"v{du+r}"
                rbf(k, g)
                rbf(k, u)
                k(f"v_mul_f32 v8, {g}, {g}")
                k(f"v_mul_f32 v8, v8, {g}")
                k(f"v_fma_f32 v8, v8, s45, {g}")
                k(f"v_mul_f32 v8, s46, v8")
                k("v_sub_f32 v8, 0, v8")
                k("v_exp_f32 v8, v8")
                k("s_nop 0")
                k("v_add_f32 v8, 1.0, v8")
                k("v_rcp_f32 v8, v8")
                k("s_nop 0")
                k(f"v_mul_f32 {g}, {g}, v8")
                rbf(k, g)
                k(f"v_mul_f32 {g}, {g}, {u}")
            for g4 in range(4):
                k(f"v_cvt_pk_bf16_f32 v8, v{dg+4*g4}, v{dg+4*g4+1}")
                k(f"v_cvt_pk_bf16_f32 v9, v{dg+4*g4+2}, v{dg+4*g4+3}")
                k(f"buffer_store_dwordx2 v[8:9], v{4+mb}, s[24:27], 0 offen offset:{(8*g4)*2}")
                k("s_nop 1")
    k(f"{name}_done:")
    return k


def final_kernel(nsplit):
    name = "final_kernel"
    k = K(name, 512, 256, 0, 128)
    k(f"""
    s_cmp_ge_u32 s2, 512
    s_cbranch_scc1 {name}_done
    s_load_dwordx2 s[4:5], s[0:1], {KA['out']}
    s_load_dwordx2 s[8:9], s[0:1], {KA['ws']}
    v_lshrrev_b32 v1, 6, v0
    v_and_b32 v2, 63, v0
    s_lshl_b32 s3, s2, 2
    v_add_u32 v1, s3, v1            ; row
    s_waitcnt lgkmcnt(0)
    """)
    srd(k, 12, 4, 2048 * 512 * 2)
    srd(k, 16, 8, 3072 * 4, WS.mod)
    srd(k, 24, 8, 2048 * 512 * 2, WS.x1)
    srd(k, 28, 8, nsplit * 2048 * 512 * 4, WS.part)
    k("""
    v_lshlrev_b32 v3, 10, v1
    v_lshlrev_b32 v4, 4, v2
    v_add_u32 v3, v3, v4
    v_lshlrev_b32 v5, 1, v3
    v_lshlrev_b32 v6, 5, v2
    buffer_load_dwordx4 v[16:19], v3, s[24:27], 0 offen
    """)
    k(f"s_mov_b32 s33, {5*2048}")
    k(f"buffer_load_dwordx4 v[48:51], v6, s[16:19], s33 offen")
    k(f"buffer_load_dwordx4 v[52:55], v6, s[16:19], s33 offen offset:16")
    for s in range(nsplit):
        k(f"s_mov_b32 s33, {s*2048*512*4}")
        k(f"buffer_load_dwordx4 v[{64+8*s}:{67+8*s}], v5, s[28:31], s33 offen")
        k(f"buffer_load_dwordx4 v[{68+8*s}:{71+8*s}], v5, s[28:31], s33 offen offset:16")
    for s in range(nsplit):
        k(f"s_waitcnt vmcnt({2*(nsplit-1-s)})")
        for j in range(8):
            if s == 0:
                k(f"v_mov_b32 v{56+j}, v{64+j}")
            else:
                k(f"v_add_f32 v{56+j}, v{56+j}, v{64+8*s+j}")
    for j in range(4):
        k(f"v_lshlrev_b32 v{20+2*j}, 16, v{16+j}")
        k(f"v_and_b32 v{21+2*j}, 0xffff0000, v{16+j}")
    for j in range(8):
        rbf(k, f"v{56+j}")
        k(f"v_mul_f32 v{56+j}, v{48+j}, v{56+j}")
        rbf(k, f"v{56+j}")
        k(f"v_add_f32 v{20+j}, v{20+j}, v{56+j}")
    for j in range(4):
        k(f"v_cvt_pk_bf16_f32 v{16+j}, v{20+2*j}, v{21+2*j}")
    k("buffer_store_dwordx4 v[16:19], v3, s[12:15], 0 offen")
    k(f"{name}_done:")
    return k


def attn_kernel():
    name = "attn_kernel"
    k = K(name, 256, 512, 65536, 256)
    k(f"""
    s_cmp_ge_u32 s2, 256
    s_cbranch_scc1 {name}_done
    s_load_dwordx2 s[4:5], s[0:1], {KA['k']}
    s_load_dwordx2 s[6:7], s[0:1], {KA['v']}
    s_load_dwordx2 s[8:9], s[0:1], {KA['ws']}
    s_and_b32 s40, s2, 7
    s_lshr_b32 s41, s2, 3
    s_and_b32 s42, s41, 3
    s_lshr_b32 s43, s41, 2          ; q block (0..7)
    s_lshl_b32 s44, s40, 2
    s_add_u32 s44, s44, s42         ; q head
    s_waitcnt lgkmcnt(0)
    s_lshl_b32 s45, s40, 19
    s_add_u32 s4, s4, s45
    s_addc_u32 s5, s5, 0
    s_add_u32 s6, s6, s45
    s_addc_u32 s7, s7, 0
    """)
    srd(k, 12, 4, 2048 * 128 * 2)
    srd(k, 16, 6, 2048 * 128 * 2)
    srd(k, 20, 8, 2048 * 4096 * 2, WS.q)
    srd(k, 24, 8, 2048 * 4096 * 2, WS.o)
    k("""
    v_and_b32 v1, 63, v0
    v_lshrrev_b32 v2, 6, v0
    v_and_b32 v3, 31, v1
    v_lshrrev_b32 v4, 5, v1          ; h
    v_readfirstlane_b32 s50, v2
    v_lshlrev_b32 v5, 5, v2
    v_add_u32 v5, v5, v3
    s_lshl_b32 s45, s43, 8
    v_add_u32 v5, s45, v5
    v_lshlrev_b32 v5, 13, v5
    s_lshl_b32 s45, s44, 8
    v_add_u32 v5, s45, v5
    v_lshlrev_b32 v6, 4, v4
    v_add_u32 v6, v5, v6
    """)
    for ds in range(8):
        k(f"buffer_load_dwordx4 v[{32+4*ds}:{35+4*ds}], v6, s[20:23], 0 offen offset:{ds*32}")
    k("""
    v_lshrrev_b32 v7, 4, v0
    v_and_b32 v8, 15, v0
    v_lshlrev_b32 v9, 8, v7
    v_lshlrev_b32 v10, 4, v8
    v_add_u32 v10, v9, v10
    v_add_u32 v6, 0x2000, v10        ; i=1
    v_and_b32 v11, 15, v7
    v_xor_b32 v11, v11, v8
    v_lshlrev_b32 v11, 4, v11
    v_add_u32 v11, v9, v11
    v_and_b32 v12, 3, v7
    v_lshlrev_b32 v12, 2, v12
    v_xor_b32 v12, v12, v8
    v_lshlrev_b32 v12, 4, v12
    v_add_u32 v12, v9, v12
    v_add_u32 v12, 0x4000, v12
    v_and_b32 v13, 15, v1
    v_lshlrev_b32 v14, 8, v3
    """)
    for ds in range(8):
        k(f"v_add_u32 v15, {2*ds}, v4")
        k("v_xor_b32 v15, v15, v13")
        k("v_lshlrev_b32 v15, 4, v15")
        k(f"v_add_u32 v{16+ds}, v14, v15")
    k("""
    v_lshrrev_b32 v7, 4, v1          ; g
    v_and_b32 v8, 15, v1             ; i
    v_lshrrev_b32 v9, 2, v8          ; i>>2
    v_lshlrev_b32 v13, 2, v4
    v_add_u32 v13, v13, v9           ; key
    v_lshlrev_b32 v13, 8, v13
    v_and_b32 v14, 1, v8
    v_lshlrev_b32 v14, 3, v14
    v_add_u32 v13, v13, v14          ; + (i&1)*8
    v_add_u32 v13, 0x4000, v13
    v_and_b32 v14, 1, v7
    v_lshlrev_b32 v14, 1, v14
    v_and_b32 v15, 3, v8
    v_lshrrev_b32 v15, 1, v15
    v_add_u32 v14, v14, v15
    v_lshlrev_b32 v9, 2, v9
    """)
    for db in range(4):
        k(f"v_add_u32 v15, {4*db}, v14")
        k("v_xor_b32 v15, v15, v9")
        k("v_lshlrev_b32 v15, 4, v15")
        k(f"v_add_u32 v{24+db}, v13, v15")
    for r in range(64):
        k(f"v_mov_b32 v{64+r}, 0")
    k("v_mov_b32 v28, 0")
    k("v_mov_b32 v29, 0")
    for r in range(16):
        k(f"v_mov_b32 v{232+r}, 0")
    NFB = 10
    PD = 8
    def issue_loads(kk, vv):
        if kk:
            k("buffer_load_dwordx4 v[160:163], v10, s[12:15], s47 offen")
            k("buffer_load_dwordx4 v[164:167], v6, s[12:15], s47 offen")
        if vv:
            k("buffer_load_dwordx4 v[168:171], v10, s[16:19], s48 offen")
            k("buffer_load_dwordx4 v[172:175], v6, s[16:19], s48 offen")
    def write_lds(buf, kk=True, vv=True):
        o = buf * 32768
        if kk:
            k(f"ds_write_b128 v11, v[160:163] offset:{o}")
            k(f"ds_write_b128 v11, v[164:167] offset:{o+8192}")
        if vv:
            k(f"ds_write_b128 v12, v[168:171] offset:{o}")
            k(f"ds_write_b128 v12, v[172:175] offset:{o+8192}")
    def mphase(par, do_pv, do_qk, stage):
        o = par * 32768
        slots = []
        if do_pv:
            for t in range(4):
                for db in range(4):
                    slots.append(("pv", t, db))
        if do_qk:
            for kb in range(2):
                for ds in range(8):
                    slots.append(("qk", kb, ds))
        nops = []
        def load(i):
            kind, a, b = slots[i]
            f = 192 + (i % NFB) * 4
            if os.environ.get("HALFLDS") and i % 2 == 1:
                nops.append(0)
                return
            if kind == "pv":
                for s in range(2):
                    k(f"ds_read_b64_tr_b16 v[{f+2*s}:{f+2*s+1}], v{24+b} offset:{o + (16*a+8*s)*256}")
                nops.append(2)
            else:
                k(f"ds_read_b128 v[{f}:{f+3}], v{16+b} offset:{o + a*8192}")
                nops.append(1)
        n = len(slots)
        k("s_setprio 1")
        for i in range(min(PD, n)):
            load(i)
        for i in range(n):
            if i + PD < n:
                load(i + PD)
            out_after = sum(nops[i+1:])
            k(f"s_waitcnt lgkmcnt({min(15,out_after)})")
            kind, a, b = slots[i]
            f = 192 + (i % NFB) * 4
            if kind == "pv":
                d = 64 + b * 16
                k(f"v_mfma_f32_32x32x16_bf16 v[{d}:{d+15}], v[{f}:{f+3}], v[{176+4*a}:{179+4*a}], v[{d}:{d+15}]")
            else:
                d = 128 + a * 16
                c = "v[232:247]" if b == 0 else f"v[{d}:{d+15}]"
                k(f"v_mfma_f32_32x32x16_bf16 v[{d}:{d+15}], v[{f}:{f+3}], v[{32+4*b}:{35+4*b}], {c}")
        k("s_setprio 0")
        if stage:
            k("s_waitcnt vmcnt(0)")
            write_lds(1 - par)
            k("s_waitcnt lgkmcnt(0)")
    cnt = [0]
    def vphase(first=False):
        cnt[0] += 1
        lab = f"{name}_nr{cnt[0]}"
        k("s_add_u32 s47, s47, 16384")
        k("s_add_u32 s48, s48, 16384")
        issue_loads(True, True)
        k("s_nop 7")
        k("v_max3_f32 v30, v128, v129, v130")
        k("v_max3_f32 v31, v131, v132, v133")
        for r in range(134, 160, 4):
            k(f"v_max3_f32 v30, v30, v{r}, v{r+1}")
            if r + 3 < 160:
                k(f"v_max3_f32 v31, v31, v{r+2}, v{r+3}")
        k("v_max_f32 v30, v30, v31")
        k("v_mov_b32 v31, v30")
        k("s_nop 1")
        k("v_permlane32_swap_b32 v30, v31")
        k("v_max_f32 v30, v30, v31")
        if not first:
            k("v_cmp_lt_f32 vcc, 0, v30")
            k("s_cbranch_vccz " + lab)
            k("v_max_f32 v30, 0, v30")
        k("v_sub_f32 v31, 0, v30")
        k("v_exp_f32 v31, v31")
        k("v_add_f32 v28, v28, v30")
        k("v_sub_f32 v30, 0, v30")
        k("v_mul_f32 v29, v29, v31")
        for r in range(32):
            k(f"v_add_f32 v{128+r}, v{128+r}, v30")
        if not first:
            for r in range(64):
                k(f"v_mul_f32 v{64+r}, v{64+r}, v31")
        for r in range(16):
            k(f"v_sub_f32 v{232+r}, 0, v28")
        k(lab + ":")
        for r in range(32):
            k(f"v_exp_f32 v{128+r}, v{128+r}")
            if r >= 2 and r % 2 == 1:
                q = r - 3
                k(f"v_add_f32 v29, v29, v{128+q}")
                k(f"v_add_f32 v29, v29, v{129+q}")
                k(f"v_cvt_pk_bf16_f32 v{176+q//2}, v{128+q}, v{129+q}")
        k("v_add_f32 v29, v29, v158")
        k("v_add_f32 v29, v29, v159")
        k("v_cvt_pk_bf16_f32 v191, v158, v159")
    k("s_mov_b32 s47, 0")
    k("s_mov_b32 s48, 0")
    issue_loads(True, False)
    k("s_waitcnt vmcnt(0)")
    write_lds(0, True, False)
    k("s_mov_b32 s47, 16384")
    issue_loads(True, True)
    k("s_waitcnt lgkmcnt(0)")
    k("s_barrier")
    k(f"""
    s_cmp_lt_u32 s50, 4
    s_cbranch_scc1 {name}_nostag
    s_barrier
    {name}_nostag:
    """)
    mphase(0, False, True, True)
    k("s_barrier")
    vphase(True)
    k("s_barrier")
    mphase(1, True, True, True)
    k("s_barrier")
    vphase()
    k("s_barrier")
    k("s_mov_b32 s49, 2")
    k(f"{name}_loop:")
    for par in range(2):
        if STAMP: k(f"s_memtime s[{60+8*par}:{61+8*par}]")
        mphase(par, True, True, True)
        if STAMP: k(f"s_memtime s[{62+8*par}:{63+8*par}]")
        k("s_barrier")
        if STAMP: k(f"s_memtime s[{64+8*par}:{65+8*par}]")
        vphase()
        if STAMP: k(f"s_memtime s[{66+8*par}:{67+8*par}]")
        k("s_barrier")
    if STAMP:
        k("s_cmp_eq_u32 s49, 10")
        k(f"s_cbranch_scc0 {name}_nost")
        k("s_waitcnt lgkmcnt(0)")
        for i in range(8):
            k(f"s_mov_b32 s{80+i}, s{60+2*i}")
        k(f"{name}_nost:")
    k(f"""
    s_add_u32 s49, s49, 2
    s_cmp_lt_u32 s49, 32
    s_cbranch_scc1 {name}_loop
    """)
    mphase(0, True, False, False)
    k(f"""
    s_cmp_ge_u32 s50, 4
    s_cbranch_scc1 {name}_nostag2
    s_barrier
    {name}_nostag2:
    s_nop 7
    s_nop 7
    v_mov_b32 v31, v29
    s_nop 1
    v_permlane32_swap_b32 v29, v31
    v_add_f32 v29, v29, v31
    v_rcp_f32 v29, v29
    v_lshlrev_b32 v6, 3, v4
    v_add_u32 v6, v5, v6
    """)
    for db in range(4):
        for g4 in range(4):
            d = 64 + db * 16 + g4 * 4
            for j in range(4):
                k(f"v_mul_f32 v{d+j}, v{d+j}, v29")
            k(f"v_cvt_pk_bf16_f32 v8, v{d}, v{d+1}")
            k(f"v_cvt_pk_bf16_f32 v9, v{d+2}, v{d+3}")
            k(f"buffer_store_dwordx2 v[8:9], v6, s[24:27], 0 offen offset:{(db*32+g4*8)*2}")
            k("s_nop 1")
    if STAMP:
        k(f"s_load_dwordx2 s[4:5], s[0:1], {KA['dbg']}")
        k("s_waitcnt lgkmcnt(0)")
        srd(k, 12, 4, 256)
        k("s_cmp_lg_u32 s2, 0")
        k(f"s_cbranch_scc1 {name}_done")
        k("v_lshlrev_b32 v1, 5, v2")
        for i in range(8):
            k(f"v_mov_b32 v3, s{80+i}")
            k(f"buffer_store_dword v3, v1, s[12:15], 0 offen offset:{4*i}")
    k(f"{name}_done:")
    return k


def main():
    ks = [
        mod_kernel(),
        ln_kernel("ln1_kernel", 0, 0, 1, None, WS.h2, None),
        gemm_kernel("qproj_kernel", WS.h2, 512, ["wq"], 4096, 4096, 512, 1, "bf16", WS.q, 4096),
        attn_kernel(),
        gemm_kernel("wo_kernel", WS.o, 4096, ["wo"], 512, 512, 4096, 8, "part"),
        ln_kernel("ln2_kernel", 8, 3, 4, 2, WS.h2, WS.x1),
        gemm_kernel("gateup_kernel", WS.h2, 512, ["wg", "wu"], 1792, 1792, 512, 1, "geglu", WS.hh, 1792),
        gemm_kernel("down_kernel", WS.hh, 1792, ["wd"], 512, 512, 1792, 7, "part"),
        final_kernel(7),
    ]
    hdr = open("cdna_kernels/" + NAME + ".s.ref").read().split("\n")
    top = [l for l in hdr if l.startswith(";") and "@launch" not in l]
    s = "\n".join(top) + "\n"
    s += "\n".join(k.launch() for k in ks) + "\n"
    s += '.amdgcn_target "amdgcn-amd-amdhsa--gfx950"\n.text\n'
    for k in ks:
        s += k.text()
    s += '.section .rodata,"a"\n'
    for k in ks:
        s += k.desc()
    open(OUT, "w").write(s)
    print("wrote", OUT, len(s))


if __name__ == "__main__":
    main()
```
